```python
import torch

def _softmax(x, axis=-1):
    return torch.softmax(x, dim=axis)

def _gelu(x):
    return torch.nn.functional.gelu(x, approximate='tanh')

def _silu(x):
    return torch.nn.functional.silu(x)

def _sigmoid(x):
    return torch.sigmoid(x)

def _layernorm(x, axis=-1, eps=1e-05):
    m = x.mean(dim=axis, keepdim=True)
    v = x.var(dim=axis, keepdim=True, unbiased=False)
    return (x - m) / torch.sqrt(v + eps)

def _scatter_add(tgt, idx, src, axis=0):
    return tgt.clone().index_add_(axis, idx, src)

def _segment_sum(src, seg, n):
    out = torch.zeros((n,) + src.shape[1:], dtype=src.dtype)
    return out.index_add_(0, seg, src)

def _pad(x, pw):
    flat = tuple((v for pair in reversed(pw) for v in pair))
    return torch.nn.functional.pad(x, flat)
kernel_name = 'recurrent_scan__sliding_local_dilated__mixer_gmlp__prompt'

def setup_inputs():

    _w = lambda a: (lambda t: t.to(torch.bfloat16) if t.is_floating_point() else t)(torch.as_tensor(a))

    def _A_setup():
        B, S, D = (1, 2048, 640)
        return {'x': _w((lambda *s: torch.randn(*s, dtype=torch.bfloat16) * 0.05)(B, S, D)), 'wqkv': _w((lambda *s: torch.randn(*s, dtype=torch.bfloat16) * 0.05)(D, 3 * D)), 'wo': _w((lambda *s: torch.randn(*s, dtype=torch.bfloat16) * 0.05)(D, D))}
    _A_in = _A_setup()

    def _B_setup():
        B, S, D, F = (1, 2048, 640, 1728)
        Fh = F // 2
        return {'x': _w((lambda *s: torch.randn(*s, dtype=torch.bfloat16) * 0.05)(B, S, D)), 'w_in': _w((lambda *s: torch.randn(*s, dtype=torch.bfloat16) * 0.4)(D, 2 * Fh)), 'w_sp': _w(0.01 * (lambda *s: torch.randn(*s, dtype=torch.bfloat16) * 0.4)(S, S)), 'b_sp': _w(1.0 + 0.01 * (lambda *s: torch.randn(*s, dtype=torch.bfloat16) * 0.05)(S)), 'w_out': _w((lambda *s: torch.randn(*s, dtype=torch.bfloat16) * 0.05)(Fh, D))}
    _B_in = _B_setup()
    return {'A_x': _A_in['x'], 'A_wqkv': _A_in['wqkv'], 'A_wo': _A_in['wo'], 'B_x': _B_in['x'], 'B_w_in': _B_in['w_in'], 'B_w_sp': _B_in['w_sp'], 'B_b_sp': _B_in['b_sp'], 'B_w_out': _B_in['w_out']}

def reference(A_x, A_wqkv, A_wo, B_x, B_w_in, B_w_sp, B_b_sp, B_w_out):

    def _A_ref(x, wqkv, wo):
        B, S, D = x.shape
        H = 32
        Dh = D // H
        W, dil = (8, 2)
        qkv = (lambda x, *d: x.permute(*d))((x @ wqkv).reshape(B, S, 3, H, Dh), 2, 0, 3, 1, 4)
        q, k, v = (qkv[0], qkv[1], qkv[2])
        scale = Dh ** (-0.5)
        pos = torch.arange(S)
        off = torch.arange(W) * dil
        idx = pos[:, None] - off[None, :]
        mask = idx >= 0
        idx_c = torch.where(mask, idx, 0).reshape(-1)
        kg = k[:, :, idx_c, :].reshape(B, H, S, W, Dh)
        vg = v[:, :, idx_c, :].reshape(B, H, S, W, Dh)
        logits = torch.einsum('bhsd,bhswd->bhsw', q, kg) * scale
        logits = torch.where(mask[None, None, :, :], logits, -1000000000.0)
        attn = _softmax(logits, axis=-1)
        o = torch.einsum('bhsw,bhswd->bhsd', attn, vg)
        return (lambda x, *d: x.permute(*d))(o, 0, 2, 1, 3).reshape(B, S, D) @ wo

    def _B_ref(x, w_in, w_sp, b_sp, w_out):
        B, S, D = x.shape
        F = w_in.shape[-1]
        Fh = F // 2
        z = _gelu(torch.einsum('bsd,df->bsf', x, w_in))
        z1 = z[..., :Fh].clone()
        z2 = _layernorm(z[..., Fh:], axis=-1)
        g = torch.einsum('ts,bsf->btf', w_sp, z2) + b_sp[None, :, None]
        return torch.einsum('bsf,fd->bsd', z1 * g, w_out)
    x = A_x
    xn = _layernorm(x, axis=-1)
    s = _A_ref(xn, A_wqkv, A_wo)
    g = _silu(_B_ref(xn, B_w_in, B_w_sp, B_b_sp, B_w_out))
    return x + s * g
```

```python
class Asm:
    def __init__(self):
        self.L = []
        self.nlab = 0
    def e(self, s):
        for ln in s.split("\n"):
            self.L.append(ln)
    def __call__(self, s):
        self.e(s)
    def lab(self, base="L"):
        self.nlab += 1
        return f"{base}_{self.nlab}"
    def text(self):
        return "\n".join(self.L) + "\n"

def v(i, n=1):
    return f"v{i}" if n == 1 else f"v[{i}:{i+n-1}]"
def s(i, n=1):
    return f"s{i}" if n == 1 else f"s[{i}:{i+n-1}]"

class VM:
    def __init__(self):
        self.ops = []
    def issue(self, tag):
        self.ops.append(tag)
    def need(self, tags):
        last = -1
        for i, t in enumerate(self.ops):
            if t in tags:
                last = i
        if last < 0:
            return None
        return len(self.ops) - 1 - last

WS_P    = 0x0000000
P_PITCH = 5632
WS_Z2N  = 0x0C00000
WS_H    = 0x1000000
H_PITCH = 1792
WS_O    = 0x1400000
WS_WOB  = 0x1800000
WS_WOUTB= 0x1900000
WS_XS   = 0x1B00000
WS_FLAG = 0x1C00000
WS_PROF = 0x1D00000
WS_BYTES = 268435456

def kernel_desc(name, vgpr=256, sgpr=102, kernarg=88):
    return f""".p2align 6
.amdhsa_kernel {name}
  .amdhsa_next_free_vgpr {vgpr}
  .amdhsa_next_free_sgpr {sgpr}
  .amdhsa_accum_offset {vgpr}
  .amdhsa_group_segment_fixed_size 0
  .amdhsa_kernarg_size {kernarg}
  .amdhsa_user_sgpr_count 2
  .amdhsa_user_sgpr_kernarg_segment_ptr 1
  .amdhsa_system_sgpr_workgroup_id_x 1
.end_amdhsa_kernel"""
```

```python
from asmgen import Asm, VM, kernel_desc
import struct

KNAME = "recurrent_scan__sliding_local_dilated__mixer_gmlp__prompt_kernel"
VLANE = 250
LDS_BYTES = 163840
OOB = 0x40000000

WS_QB   = 0x0000000
QB_BLK  = 2048*160
WS_Z1   = 0x0800000
WS_Z2N  = 0x0C00000
ZB_BLK  = 2048*224
WS_H    = 0x1000000
H_PITCH = 1792
WS_O    = 0x1400000
WS_WB   = 0x1800000
WB_CB   = 24*10240
WS_XS   = 0x1B00000
WS_RSG  = WS_XS + 0x80000
WS_CSA  = WS_XS + 0x90000
WS_CSB  = WS_XS + 0xD0000
WS_FLAG = 0x1E00000
WS_PROF = 0x1F00000
WS_BYTES = 268435456
F_REF  = WS_FLAG
F_W    = WS_FLAG + 0x1000
F_Z    = WS_FLAG + 0x3000
F_P    = WS_FLAG + 0x4000
F_H    = WS_FLAG + 0x5000
F_O    = WS_FLAG + 0x6000

S_WG, S_WAVE = 2, 3
SRD_X, SRD_WS, SRD_W, SRD_M = 4, 8, 12, 16
T0 = 20
S_M, S_J, S_NONCE, S_LW = 32, 33, 34, 35
S_TB, S_FB = 36, 37
S_A = 38
SRD_Z = 60
PTR = 64
P_X, P_WQKV, P_WO, P_BX, P_WIN, P_WSP, P_BSP, P_WOUT, P_OUT, P_DBG, P_WS = [64+2*i for i in range(11)]
S_PROF = 86
S_T00 = 58

def f32hex(x):
    return hex(struct.unpack("<I", struct.pack("<f", x))[0])
GELU_K0 = -2.0*0.7978845608028654*1.4426950408889634
GELU_K1 = GELU_K0*0.044715
LOG2E = 1.4426950408889634

def load_ptrs(a):
    a(f"s_load_dwordx16 s[64:79], s[0:1], 0")
    a(f"s_load_dwordx4 s[80:83], s[0:1], 64")
    a(f"s_load_dwordx2 s[84:85], s[0:1], 80")

def mk_srd(a, dst, ptr, nbytes):
    a(f"s_mov_b32 s{dst}, s{ptr}")
    a(f"s_mov_b32 s{dst+1}, s{ptr+1}")
    a(f"s_mov_b32 s{dst+2}, {hex(nbytes) if isinstance(nbytes,int) else nbytes}")
    a(f"s_mov_b32 s{dst+3}, 0x20000")

import os
PROFBAR = os.environ.get("PROFBAR", "") == "1"
VPROF = 248
NSTAMP = 128
def prof_dump_v(a):
    a("s_waitcnt lgkmcnt(0)")
    a(f"v_writelane_b32 v{VPROF+1}, s{S_T00}, 63")
    a(f"s_lshl_b32 s20, s{S_WG}, 3")
    a(f"s_add_u32 s20, s20, s{S_WAVE}")
    a("s_lshl_b32 s20, s20, 9")
    a(f"s_add_u32 s20, s20, {WS_PROF + 0x10000}")
    a(f"v_lshlrev_b32 v2, 2, v{VLANE}")
    a(f"buffer_store_dword v{VPROF}, v2, s[{SRD_WS}:{SRD_WS+3}], s20 offen")
    a(f"buffer_store_dword v{VPROF+1}, v2, s[{SRD_WS}:{SRD_WS+3}], s20 offen offset:256")

class Role:
    def __init__(self, a):
        self.a = a; self.names = []; self.vm = VM()
    def stamp(self, idx):
        a = self.a
        a(f"s_memtime s[{S_PROF}:{S_PROF+1}]")
        a("s_waitcnt lgkmcnt(0)")
        a(f"v_writelane_b32 v{VPROF + (idx >> 6)}, s{S_PROF}, {idx & 63}")
    def bar(self, name):
        if PROFBAR and len(self.names) < NSTAMP-2: self.stamp(len(self.names))
        self.a(f"s_barrier   ; {name}"); self.names.append(name)
    def wait(self, tags):
        if isinstance(tags, str) or isinstance(tags, tuple): tags = [tags]
        n = self.vm.need(set(tags))
        assert n is not None, tags
        assert n <= 63, ("vmcnt overflow", tags, n)
        self.a(f"s_waitcnt vmcnt({n})")
    def issue(self, tag): self.vm.issue(tag)

class Slice:
    def __init__(self, tag, lo, hi, issue, minbar=None):
        self.tag, self.lo, self.hi, self.issue, self.minbar = tag, lo, hi, issue, minbar

class DMA(Role):
    def __init__(self, a):
        super().__init__(a); self.slices = []; self.bars = []; self.pre_first = []
    def emit(self):
        live = []; nxt = 0; done = set()
        def try_issue():
            nonlocal nxt
            while nxt < len(self.slices):
                s = self.slices[nxt]
                if s.minbar is not None and s.minbar not in done: break
                if any(not (s.hi <= o.lo or o.hi <= s.lo) for o in live): break
                s.issue(); live.append(s); nxt += 1
        try_issue()
        for f in self.pre_first: f()
        for (name, need, frees) in self.bars:
            if need is not None:
                assert need in self.vm.ops, f"slice {need} not issued before barrier {name}"
                self.wait([need])
            self.bar(name); done.add(name)
            live[:] = [o for o in live if o.tag not in frees]
            try_issue()
        assert nxt == len(self.slices), "unissued slices"

class Side(Role):
    def __init__(self, a):
        super().__init__(a); self.pre = {}; self.post = {}
    def at_pre(self, name, f): self.pre.setdefault(name, []).append(f)
    def at_post(self, name, f): self.post.setdefault(name, []).append(f)
    def emit(self, names):
        used = set()
        for n in names:
            for f in self.pre.get(n, []): f()
            self.bar(n)
            for f in self.post.get(n, []): f()
            used.add(n)
        for k in list(self.pre) + list(self.post): assert k in used, k

def interleave(m, r):
    out = []; ri = 0
    n2 = max(0, len(r) - len(m) + 2)
    for i, x in enumerate(m):
        out.append(x)
        k = 2 if i < max(n2, len(r)//3) else 1
        for _ in range(k):
            if ri < len(r):
                out.append(r[ri]); ri += 1
    out += r[ri:]
    return out

def kloop(a, cons, name, nslices, reads, mfmas, last_steps=2, hooks=None, first=None):
    hooks = hooks or {}
    def hk(k):
        for f in hooks.get(k, []): f()
    hk(("pre", 0))
    cons.bar(f"{name}.t0")
    hk(("post", 0))
    for x in reads(0, 0, 0): a(x)
    for t in range(nslices):
        last = t == nslices - 1
        a("s_waitcnt lgkmcnt(0)")
        if last and last_steps == 1:
            for x in mfmas(t, 0, 0): a(x)
            break
        for x in interleave(mfmas(t, 0, 0), reads(t, 1, 1)): a(x)
        a("s_waitcnt lgkmcnt(0)")
        if not last:
            hk(("pre", t+1))
            cons.bar(f"{name}.t{t+1}")
            hk(("post", t+1))
            for x in interleave(mfmas(t, 1, 1), reads(t+1, 0, 0)): a(x)
        else:
            for x in mfmas(t, 1, 1): a(x)

def poll_loop(a, issue_fn, check_fn, lab, active_scc=None, limit=4000, cnt=T0+10):
    lp, ok = a.lab(lab), a.lab(lab + "ok")
    a(f"s_mov_b32 s{cnt}, 0")
    a(f"{lp}:")
    check_fn()
    a("s_nop 3")
    a("s_cmp_eq_u64 vcc, 0")
    a(f"s_cbranch_scc1 {ok}")
    a(f"s_add_u32 s{cnt}, s{cnt}, 1")
    a(f"s_cmp_gt_u32 s{cnt}, {limit}")
    a(f"s_cbranch_scc1 {ok}")
    issue_fn()
    a("s_waitcnt vmcnt(0)")
    a(f"s_branch {lp}")
    a(f"{ok}:")
```

```python
import re, sys
TRANS = ("v_exp_f32","v_log_f32","v_rcp_f32","v_rsq_f32","v_sqrt_f32","v_sin_f32","v_cos_f32")
def regs(tok):
    tok = tok.strip()
    neg = tok.lstrip("-|").rstrip("|")
    m = re.fullmatch(r"([vs])(\d+)", neg)
    if m: return {(m.group(1), int(m.group(2)))}
    m = re.fullmatch(r"([vs])\[(\d+):(\d+)\]", neg)
    if m: return {(m.group(1), i) for i in range(int(m.group(2)), int(m.group(3))+1)}
    if neg == "vcc": return {("s","vcc")}
    if neg == "exec": return {("s","exec")}
    if neg == "m0": return {("s","m0")}
    return set()
class I:
    pass
def parse(line, n):
    t = line.split(";")[0].strip()
    if not t or t.endswith(":") or t.startswith("."): return None
    p = t.split(None, 1)
    op = p[0]; rest = p[1] if len(p) > 1 else ""
    ops = [x.strip() for x in re.split(r",(?![^\[]*\])", rest)]
    last = ops[-1].split() if ops else []
    mods = " ".join(last[1:]) if len(last) > 1 else ""
    if ops and last: ops[-1] = last[0]
    i = I(); i.op = op; i.n = n; i.text = t; i.mods = mods
    R = [regs(x) for x in ops]
    i.w = set(); i.r = set(); i.kind = "other"
    allr = lambda l: set().union(*l) if l else set()
    if op.startswith("v_mfma"):
        i.kind = "mfma"; i.w = R[0]; i.A = R[1]; i.B = R[2]; i.C = R[3]; i.r = allr(R[1:])
    elif op.startswith("v_"):
        i.kind = "valu"
        base = op.replace("_e32","").replace("_e64","").replace("_dpp","")
        i.base = base
        if base.startswith("v_permlane") and "swap" in base:
            i.w = R[0] | R[1]; i.r = R[0] | R[1]; i.perm = True
        else:
            i.w = R[0]; i.r = allr(R[1:])
            if base.startswith("v_dot2c") or base.startswith("v_fmac") or base.startswith("v_pk_fmac"): i.r |= R[0]
            if base.startswith("v_cmp") and not op.endswith("_e64") and not R[0]: i.w = {("s","vcc")}
        i.dpp = ("_dpp" in op) or ("row_" in t) or ("quad_perm" in t)
        i.dot = base.startswith("v_dot")
        i.trans = base in TRANS
        i.rfl = base in ("v_readfirstlane_b32", "v_readlane_b32")
    elif op.startswith("ds_"):
        i.kind = "ds"
        if op.startswith("ds_read") or op.startswith("ds_bperm") or op.startswith("ds_perm"):
            i.w = R[0]; i.r = allr(R[1:])
        else: i.r = allr(R)
    elif op.startswith("buffer_") or op.startswith("global_"):
        i.kind = "vmem"
        i.lds = bool(re.search(r"\blds\b", t))
        if "load" in op and not i.lds:
            i.w = R[0]; i.r = allr(R[1:])
        else: i.r = allr(R)
        i.wide_store = ("store" in op) and (op.endswith("x3") or op.endswith("x4"))
        i.data = R[0] if "store" in op else set()
    elif op.startswith("s_"):
        i.kind = "salu"
        if op in ("s_nop",): i.nop = int(ops[0], 0)
        elif op.startswith(("s_waitcnt","s_barrier","s_branch","s_cbranch","s_endpgm","s_sleep","s_setprio")): pass
        elif op.startswith("s_cmp") or op.startswith("s_bitcmp"): i.r = allr(R)
        else:
            i.w = R[0]; i.r = allr(R[1:])
            if "saveexec" in op: i.w |= {("s","exec")}
    return i
def check(text, verbose=True):
    ins = []
    for n, l in enumerate(text.split("\n")):
        x = parse(l, n+1)
        if x: ins.append(x)
    errs = []
    global fixes
    fixes = {}
    def V(s): return {r for r in s if r[0] == "v"}
    def S(s): return {r for r in s if r[0] == "s"}
    for k, c in enumerate(ins):
        dist = 0
        for b in range(k-1, max(-1, k-24), -1):
            p = ins[b]
            if p.op in ("s_branch", "s_endpgm"): break
            need = 0; why = ""
            def req(n, w):
                nonlocal need, why
                if n > need: need, why = n, w
            pw = p.w
            if p.kind == "valu":
                if c.kind == "valu" and (getattr(c, "dpp", False) or getattr(c, "perm", False)) and V(pw) & c.r: req(2, "valu->dpp/permlane")
                if c.kind == "mfma" and V(pw) & c.r: req(2, "valu->mfma")
                if p.dot:
                    if c.kind == "valu" and c.dot and c.base == p.base:
                        srcs = c.r - c.w
                        if V(pw) & srcs: req(3, "dot->dot srcAB")
                    elif c.kind in ("valu", "mfma", "ds", "vmem") and V(pw) & (c.r | c.w): req(3, "dot->other")
                if p.trans and c.kind == "valu" and not c.trans and V(pw) & c.r: req(1, "trans->valu")
                if S(pw):
                    if c.kind == "valu" and S(pw) & c.r: req(4 if getattr(c, "rfl", False) else 2, "valu sgpr->valu")
                    if c.kind == "vmem" and S(pw) & c.r: req(5, "valu sgpr->vmem")
                if c.kind == "valu" and getattr(c, "rfl", False) and V(pw) & c.r: req(1, "valu->readlane")
            if p.kind == "mfma":
                if c.kind == "mfma":
                    if pw & (c.A | c.B): req(8, "mfma D->A/B")
                    elif pw & c.C and c.C != pw: req(6, "mfma D->C partial")
                elif c.kind in ("valu", "ds", "vmem") and pw & (c.r | c.w): req(8, "mfma D->valu/mem")
                if c.kind == "valu" and p.C & c.w and not (pw & c.w): req(3, "mfma C WAR")
            if p.kind == "vmem" and getattr(p, "wide_store", False):
                if c.kind == "valu" and p.data & c.w: req(2, "store data WAR")
                elif c.kind in ("ds", "vmem") and p.data & c.w: req(1, "store data WAR(mem)")
            if p.kind == "salu" and ("s", "m0") in pw and c.kind == "vmem" and c.lds: req(1, "m0->lds dma")
            if p.kind == "salu" and ("s","exec") in pw and c.kind == "valu" and getattr(c, "dpp", False): req(1, "salu exec->dpp (caution)")
            if need > dist:
                errs.append(f"line {c.n}: '{c.text}' needs {need} after line {p.n}: '{p.text}' (have {dist}) [{why}]")
                fixes[c.n] = max(fixes.get(c.n, 0), need - dist)
            dist += (p.nop + 1) if hasattr(p, "nop") else 1
            if dist >= 12: break
    if verbose:
        for e in errs[:40]: print("HAZARD", e)
        print(f"hazard check: {len(errs)} problems in {len(ins)} instrs")
    return errs
def fix(text, verbose=True):
    total = 0
    for it in range(20):
        errs = check(text, verbose=False)
        if not errs: break
        L = text.split("\n")
        out = []; last = -100
        for n, l in enumerate(L):
            k = fixes.get(n + 1)
            if k and n - last > 12:
                out.append(f"s_nop {k-1}   ; hz"); total += 1; last = n
            out.append(l)
        text = "\n".join(out)
    if verbose: print(f"hz.fix: inserted {total} nops, remaining {len(check(text, verbose=False))}")
    return text
if __name__ == "__main__":
    check(open(sys.argv[1]).read())
```

```python
from fw2 import *
import os
VAR = os.environ.get('KVAR', '')

XPART = 16384
SLOT, NR = 32768, 4
AUX = NR*SLOT
L_GB = AUX
L_RS = AUX + 16384
L_CS = L_RS + 1024
L_ST = L_CS + 1024
L_ZT = L_ST + 2048

def ids(a):
    a(f"s_and_b32 s{T0}, s{S_WG}, 7")
    a(f"s_lshr_b32 s{T0+1}, s{S_WG}, 3")
    a(f"s_lshr_b32 s{T0+2}, s{T0+1}, 2")
    a(f"s_and_b32 s{T0+3}, s{T0+1}, 3")
    a(f"s_and_b32 s{T0+4}, s{T0}, 1")
    a(f"s_lshr_b32 s{T0+5}, s{T0}, 1")
    a(f"s_lshl_b32 s{S_M}, s{T0+4}, 3")
    a(f"s_add_u32 s{S_M}, s{S_M}, s{T0+2}")
    a(f"s_lshl_b32 s{S_J}, s{T0+5}, 2")
    a(f"s_add_u32 s{S_J}, s{S_J}, s{T0+3}")
    a(f"s_lshl_b32 s{S_TB}, s{T0+5}, 3")
    a(f"s_add_u32 s{S_TB}, s{S_TB}, s{T0+2}")
    a(f"s_lshl_b32 s{S_FB}, s{T0+4}, 2")
    a(f"s_add_u32 s{S_FB}, s{S_FB}, s{T0+3}")
    a(f"s_and_b32 s{S_LW}, s{S_WAVE}, 1")

def nonce_fin(a):
    a("s_waitcnt lgkmcnt(0)")
    a(f"s_mul_i32 s{S_NONCE}, s{S_NONCE}, 1664525")
    a(f"s_add_u32 s{S_NONCE}, s{S_NONCE}, 1013904223")

def wa_cols(a, d0, d1):
    a(f"s_add_u32 s{d0}, s{S_J}, 13")
    a(f"s_min_u32 s{d0}, s{d0}, 26")
    a(f"s_lshl_b32 s{d0}, s{d0}, 7")
    a(f"s_min_u32 s{d1}, s{S_J}, 12")
    a(f"s_lshl_b32 s{d1}, s{d1}, 7")

def srd_win(a, dst):
    a(f"s_cmp_lt_u32 s{S_J}, 14")
    a(f"s_cselect_b32 s{T0}, {640*3456}, 0")
    mk_srd(a, dst, P_WIN, f"s{T0}")
def srd_wqkv(a, dst):
    a(f"s_cmp_lt_u32 s{S_J}, 15")
    a(f"s_cselect_b32 s{T0}, {640*3840}, 0")
    mk_srd(a, dst, P_WQKV, f"s{T0}")

class DR:
    VX, VWA, VWB = 10, 18, 22
    T = 80
    S_WA0, S_WA1, S_WBB, S_M0, S_XOFF = S_A, S_A+1, S_A+2, S_A+3, S_A+4

def p1_dma(D):
    a = D.a; T = DR.T; w = f"s{S_LW}"
    mk_srd(a, SRD_X, P_X, 2048*1280)
    srd_win(a, SRD_W)
    a(f"s_lshl_b32 s{DR.S_M0}, {w}, 10")
    a(f"v_lshrrev_b32 v{T}, 3, v{VLANE}")
    a(f"v_lshrrev_b32 v{T+1}, 4, v{VLANE}")
    a(f"v_and_b32 v{T+3}, 7, v{VLANE}")
    a(f"s_lshl_b32 s{T0+1}, {w}, 2")
    a(f"v_add_u32 v{T+2}, s{T0+1}, v{T+1}")
    a(f"v_xor_b32 v{T+2}, v{T+2}, v{T+3}")
    a(f"s_lshl_b32 s{T0+1}, s{S_M}, 7")
    a(f"s_lshl_b32 s{T0+2}, {w}, 3")
    a(f"s_add_u32 s{T0+1}, s{T0+1}, s{T0+2}")
    a(f"v_add_u32 v{T+4}, s{T0+1}, v{T}")
    a(f"v_mul_u32_u24 v{T+4}, 1280, v{T+4}")
    a(f"v_lshl_add_u32 v{DR.VX}, v{T+2}, 4, v{T+4}")
    for i in range(1, 8):
        a(f"v_add_u32 v{DR.VX+i}, {i*16*1280}, v{DR.VX}")
    a(f"v_and_b32 v{T+2}, 1, v{T+1}")
    a(f"s_lshl_b32 s{T0+1}, {w}, 1")
    a(f"v_or_b32 v{T+2}, s{T0+1}, v{T+2}")
    a(f"v_lshlrev_b32 v{T+2}, 1, v{T+2}")
    a(f"v_xor_b32 v{T+2}, v{T+2}, v{T+3}")
    a(f"v_lshlrev_b32 v{T+2}, 4, v{T+2}")
    a(f"v_add_u32 v{T+4}, s{T0+2}, v{T}")
    a(f"v_mul_u32_u24 v{T+5}, 3456, v{T+4}")
    a(f"v_add_u32 v{DR.VWA}, v{T+5}, v{T+2}")
    a(f"v_mul_u32_u24 v{T+5}, 3840, v{T+4}")
    a(f"v_add_u32 v{DR.VWB}, v{T+5}, v{T+2}")
    for i in range(1, 4):
        a(f"v_add_u32 v{DR.VWA+i}, {i*16*3456}, v{DR.VWA}")
        a(f"v_add_u32 v{DR.VWB+i}, {i*16*3840}, v{DR.VWB}")
    wa_cols(a, DR.S_WA0, DR.S_WA1)
    a(f"s_lshl_b32 s{DR.S_WBB}, s{S_J}, 8")
    def issue(ph, t):
        def f():
            if ph == "b" and t == 0: srd_wqkv(a, SRD_W)
            base = ((t + (10 if ph == "b" else 0)) % NR)*SLOT
            a(f"s_mov_b32 s{DR.S_XOFF}, {t*128}")
            if ph == "a":
                a(f"s_add_u32 s{T0}, s{DR.S_WA0}, {t*64*3456}")
                a(f"s_add_u32 s{T0+1}, s{DR.S_WA1}, {t*64*3456}")
            else:
                a(f"s_add_u32 s{T0}, s{DR.S_WBB}, {t*64*3840}")
                a(f"s_add_u32 s{T0+1}, s{DR.S_WBB}, {t*64*3840 + 128}")
            VW = DR.VWA if ph == "a" else DR.VWB
            lst = [("x", i) for i in range(8)]
            wl = [("w", ln, i) for ln in range(2) for i in range(4)]
            for xx, ww in zip(lst, wl):
                i = xx[1]
                a(f"s_add_u32 m0, s{DR.S_M0}, {base + i*2048}")
                a("s_nop 0")
                a(f"buffer_load_dwordx4 v{DR.VX+i}, s[{SRD_X}:{SRD_X+3}], s{DR.S_XOFF} offen lds"); D.issue((ph, t))
                _, ln, i = ww
                a(f"s_add_u32 m0, s{DR.S_M0}, {base + XPART + ln*8192 + i*2048}")
                a("s_nop 0")
                a(f"buffer_load_dwordx4 v{VW+i}, s[{SRD_W}:{SRD_W+3}], s{T0+ln} offen lds"); D.issue((ph, t))
        return f
    for ph in ("a", "b"):
        for t in range(10):
            lo = ((t + (10 if ph == "b" else 0)) % NR)*SLOT
            D.slices.append(Slice((ph, t), lo, lo + SLOT, issue(ph, t), minbar=("a.t0" if (ph, t) == ("a", 3) else None)))
    for ph in ("a", "b"):
        for t in range(10):
            D.bars.append((f"{ph}.t{t}", (ph, t), [(ph, t-1)] if t else []))
        D.bars.append((f"{ph}.E", None, [(ph, 9)]))

class SR:
    DX, DW, DC = 10, 30, 50
    ACC = 70
    T = 80
    PL = 100
    XL = 136
    VA = 200

def red_q(a, regs_, tmps):
    for op in ("v_permlane32_swap_b32", "v_permlane16_swap_b32"):
        for r, t in zip(regs_, tmps): a(f"v_mov_b32 v{t}, v{r}")
        a("s_nop 1")
        for r, t in zip(regs_, tmps): a(f"{op} v{r}, v{t}")
        a("s_nop 0")
        for r, t in zip(regs_, tmps): a(f"v_add_f32 v{r}, v{r}, v{t}")

def p1_side(Sd):
    a = Sd.a; R = SR; T = R.T; sw = f"s{S_LW}"
    S_C0, S_C1 = S_A, S_A+1
    def p0_issue():
        mk_srd(a, SRD_X, P_X, 2048*1280)
        a(f"s_lshl_b32 s{T0}, s{S_M}, 7")
        a(f"s_lshl_b32 s{T0+1}, s{S_J}, 3")
        a(f"s_add_u32 s{T0}, s{T0}, s{T0+1}")
        a(f"s_lshl_b32 s{T0+1}, {sw}, 2")
        a(f"s_add_u32 s{T0}, s{T0}, s{T0+1}")
        a(f"v_lshrrev_b32 v{T}, 4, v{VLANE}")
        a(f"v_add_u32 v{R.VA}, s{T0}, v{T}")
        a(f"v_mul_u32_u24 v{T+1}, 1280, v{R.VA}")
        a(f"v_and_b32 v{T+2}, 15, v{VLANE}")
        a(f"v_lshl_add_u32 v{T+1}, v{T+2}, 4, v{T+1}")
        for i in range(5):
            a(f"buffer_load_dwordx4 v[{R.DX+4*i}:{R.DX+4*i+3}], v{T+1}, s[{SRD_X}:{SRD_X+3}], 0 offen offset:{i*256}"); Sd.issue("p0x")
    def rowstats():
        a(f"v_mov_b32 v{T+8}, 0x3f803f80")
        for r in range(4): a(f"v_mov_b32 v{R.ACC+r}, 0")
        Sd.wait("p0x")
        for d in range(20):
            a(f"v_dot2c_f32_bf16 v{R.ACC+(d&1)}, v{R.DX+d}, v{T+8}")
            a(f"v_dot2c_f32_bf16 v{R.ACC+2+(d&1)}, v{R.DX+d}, v{R.DX+d}")
        a("s_nop 2")
        a(f"v_add_f32 v{R.ACC}, v{R.ACC}, v{R.ACC+1}")
        a(f"v_add_f32 v{R.ACC+2}, v{R.ACC+2}, v{R.ACC+3}")
        for rot in (8, 4, 2, 1):
            a("s_nop 0")
            a(f"v_add_f32_dpp v{R.ACC}, v{R.ACC}, v{R.ACC} row_ror:{rot} row_mask:0xf bank_mask:0xf")
            a(f"v_add_f32_dpp v{R.ACC+2}, v{R.ACC+2}, v{R.ACC+2} row_ror:{rot} row_mask:0xf bank_mask:0xf")
        a(f"v_mul_f32 v{R.ACC}, {f32hex(1/640)}, v{R.ACC}")
        a(f"v_mul_f32 v{T}, v{R.ACC}, v{R.ACC}")
        a(f"v_mov_b32 v{T+1}, {f32hex(1/640)}")
        a(f"v_fma_f32 v{T+2}, v{R.ACC+2}, v{T+1}, -v{T}")
        a(f"v_max_f32 v{T+2}, 0, v{T+2}")
        a(f"v_add_f32 v{T+2}, {f32hex(1e-5)}, v{T+2}")
        a(f"v_rsq_f32 v{T+4}, v{T+2}")
        a(f"v_mov_b32 v{T+5}, s{S_NONCE}")
        a(f"v_mov_b32 v{T+7}, s{S_NONCE}")
        a(f"v_mul_f32 v{T+6}, v{R.ACC}, v{T+4}")
        a(f"v_mul_f32 v{T+6}, -1.0, v{T+6}")
        a(f"v_lshlrev_b32 v{T}, 4, v{R.VA}")
        a(f"v_add_u32 v{T}, {WS_RSG}, v{T}")
        a(f"v_and_b32 v{T+1}, 15, v{VLANE}")
        a(f"v_cmp_eq_u32 vcc, 0, v{T+1}")
        a(f"v_mov_b32 v{T+2}, {hex(OOB)}")
        a("s_nop 0")
        a(f"v_cndmask_b32 v{T}, v{T+2}, v{T}, vcc")
        a(f"buffer_store_dwordx4 v[{T+4}:{T+7}], v{T}, s[{SRD_WS}:{SRD_WS+3}], 0 offen sc1"); Sd.issue("rsg")
    def rs_loads():
        a(f"buffer_load_dwordx4 v[{R.PL+32}:{R.PL+35}], v{R.VA+1}, s[{SRD_WS}:{SRD_WS+3}], 0 offen sc1")
    def tabA_issue():
        a(f"s_lshl_b32 s{T0}, s{S_M}, 7")
        a(f"s_lshl_b32 s{T0+1}, {sw}, 6")
        a(f"s_add_u32 s{T0}, s{T0}, s{T0+1}")
        a(f"v_add_u32 v{R.VA+1}, s{T0}, v{VLANE}")
        a(f"v_lshlrev_b32 v{R.VA+1}, 4, v{R.VA+1}")
        a(f"v_add_u32 v{R.VA+1}, {WS_RSG}, v{R.VA+1}")
        rs_loads(); Sd.issue("tabA")
    def tag_check(lst):
        a(f"v_xor_b32 v{T}, s{S_NONCE}, v{lst[0]}")
        for r in lst[1:]:
            a(f"v_xor_b32 v{T+1}, s{S_NONCE}, v{r}")
            a(f"v_or_b32 v{T}, v{T}, v{T+1}")
        a(f"v_cmp_ne_u32 vcc, 0, v{T}")
    def tabA_check():
        Sd.wait("tabA")
        poll_loop(a, rs_loads, lambda: tag_check([R.PL+33, R.PL+35]), "LtA")
    def tabA_write():
        a(f"s_lshl_b32 s{T0}, {sw}, 9")
        a(f"s_add_u32 s{T0}, s{T0}, {L_RS}")
        a(f"v_lshl_add_u32 v{T+4}, v{VLANE}, 3, s{T0}")
        a(f"v_mov_b32 v{R.PL+33}, v{R.PL+34}")
        a(f"ds_write_b64 v{T+4}, v[{R.PL+32}:{R.PL+33}]")
        a("s_waitcnt lgkmcnt(0)")
    def wc_issue():
        a(f"s_cmp_lt_u32 s{S_WG}, 80")
        a(f"s_cselect_b32 s{T0+2}, s{P_WO}, s{P_WOUT}")
        a(f"s_cselect_b32 s{T0+3}, s{P_WO+1}, s{P_WOUT+1}")
        a(f"s_mov_b32 s{T0+4}, {864*1280}")
        a(f"s_cselect_b32 s{T0+4}, {640*1280}, s{T0+4}")
        a(f"s_cselect_b32 s{T0+5}, 0, 80")
        a(f"s_cmp_lt_u32 s{S_WG}, 188")
        a(f"s_cselect_b32 s{T0+4}, s{T0+4}, 0")
        a(f"s_mov_b32 s{SRD_M}, s{T0+2}")
        a(f"s_mov_b32 s{SRD_M+1}, s{T0+3}")
        a(f"s_mov_b32 s{SRD_M+2}, s{T0+4}")
        a(f"s_mov_b32 s{SRD_M+3}, 0x20000")
        a(f"s_sub_u32 s{T0+5}, s{S_WG}, s{T0+5}")
        a(f"s_mul_i32 s{T0+5}, s{T0+5}, {8*1280}")
        a(f"s_lshl_b32 s{T0}, {sw}, 6")
        a(f"v_add_u32 v{T}, s{T0}, v{VLANE}")
        a(f"v_lshlrev_b32 v{T}, 4, v{T}")
        for i in range(5):
            a(f"buffer_load_dwordx4 v[{R.DC+4*i}:{R.DC+4*i+3}], v{T}, s[{SRD_M}:{SRD_M+3}], s{T0+5} offen offset:{(i%2)*2048}"); Sd.issue("wc")
            if i % 2 == 1: a(f"s_add_u32 s{T0+5}, s{T0+5}, 4096")
    for u in range(640): assert (u*820) >> 16 == u//80
    for c in range(80): assert (c*6554) >> 16 == c//10
    def wc_store(i0, i1):
        def f():
            if i0 == 0:
                Sd.wait("wc")
                a(f"s_lshr_b32 s{S_C0}, s{S_WG}, 3")
                a(f"s_mul_i32 s{S_C0}, s{S_C0}, 10240")
                a(f"s_add_u32 s{S_C0}, s{S_C0}, {WS_WB}")
                a(f"s_and_b32 s{S_C1}, s{S_WG}, 7")
                a(f"s_lshl_b32 s{S_C1}, s{S_C1}, 3")
                a(f"s_cmp_lt_u32 s{S_WG}, 188")
                a(f"s_cselect_b32 s{T0}, {hex(WS_BYTES)}, 0")
                mk_srd(a, SRD_M, P_WS, f"s{T0}")
            for i in range(i0, i1):
                a(f"s_lshl_b32 s{T0}, {sw}, 6")
                a(f"s_add_u32 s{T0}, s{T0}, {128*i}")
                a(f"v_add_u32 v{T}, s{T0}, v{VLANE}")
                a(f"v_mul_u32_u24 v{T+1}, 820, v{T}")
                a(f"v_lshrrev_b32 v{T+1}, 16, v{T+1}")
                a(f"v_mul_u32_u24 v{T+2}, 80, v{T+1}")
                a(f"v_sub_u32 v{T+2}, v{T}, v{T+2}")
                a(f"v_mul_u32_u24 v{T+3}, 6554, v{T+2}")
                a(f"v_lshrrev_b32 v{T+3}, 16, v{T+3}")
                a(f"v_mul_u32_u24 v{T+4}, 10, v{T+3}")
                a(f"v_sub_u32 v{T+4}, v{T+2}, v{T+4}")
                a(f"v_add_u32 v{T+1}, s{S_C1}, v{T+1}")
                a(f"v_and_b32 v{T+5}, 0x33, v{T+1}")
                a(f"v_and_b32 v{T+6}, 4, v{T+1}")
                a(f"v_lshl_or_b32 v{T+5}, v{T+6}, 1, v{T+5}")
                a(f"v_bfe_u32 v{T+6}, v{T+1}, 3, 1")
                a(f"v_lshl_or_b32 v{T+5}, v{T+6}, 2, v{T+5}")
                a(f"v_mul_u32_u24 v{T+5}, 160, v{T+5}")
                a(f"v_lshl_add_u32 v{T+5}, v{T+4}, 4, v{T+5}")
                a(f"v_mul_u32_u24 v{T+3}, {WB_CB}, v{T+3}")
                a(f"v_add_u32 v{T+5}, v{T+5}, v{T+3}")
                a(f"buffer_store_dwordx4 v[{R.DC+4*i}:{R.DC+4*i+3}], v{T+5}, s[{SRD_M}:{SRD_M+3}], s{S_C0} offen sc1"); Sd.issue("wcs")
        return f
    def flag_store(addr_fn, tag):
        def f():
            addr_fn()
            a(f"s_cmp_eq_u32 {sw}, 0")
            a(f"s_cselect_b32 s{T0}, s{T0}, {hex(OOB)}")
            a(f"v_mov_b32 v{T}, {hex(OOB)}")
            a(f"v_mov_b32 v{T+1}, s{T0}")
            a(f"v_cmp_eq_u32 vcc, 0, v{VLANE}")
            a(f"v_mov_b32 v{T+2}, s{S_NONCE}")
            a("s_nop 0")
            a(f"v_cndmask_b32 v{T}, v{T}, v{T+1}, vcc")
            a(f"buffer_store_dword v{T+2}, v{T}, s[{SRD_WS}:{SRD_WS+3}], 0 offen sc1"); Sd.issue(tag)
        return f
    Sd.flag_store = flag_store
    def fw_addr():
        a(f"s_lshl_b32 s{T0}, s{S_WG}, 2")
        a(f"s_add_u32 s{T0}, s{T0}, {F_W}")
    def zok_srd():
        a(f"s_cmp_lt_u32 s{S_J}, 14")
        a(f"s_cselect_b32 s{T0}, {hex(WS_BYTES)}, 0")
        mk_srd(a, SRD_Z, P_WS, f"s{T0}")
    def pub_stats():
        zok_srd()
        a(f"s_lshl_b32 s{T0}, {sw}, 6")
        a(f"v_add_u32 v{R.VA+3}, s{T0}, v{VLANE}")
        a(f"v_lshlrev_b32 v{T}, 3, v{R.VA+3}")
        a(f"v_add_u32 v{T+1}, {L_ST}, v{T}")
        a(f"ds_read_b64 v[{T+2}:{T+3}], v{T+1}")
        a(f"ds_read_b64 v[{T+8}:{T+9}], v{T+1} offset:1024")
        a(f"s_mul_i32 s{T0}, s{S_M}, 14")
        a(f"s_add_u32 s{T0}, s{T0}, s{S_J}")
        a(f"s_lshl_b32 s{T0}, s{T0}, 11")
        a(f"s_add_u32 s{T0}, s{T0}, {WS_XS}")
        a(f"v_lshlrev_b32 v{T}, 4, v{R.VA+3}")
        a(f"v_add_u32 v{T}, s{T0}, v{T}")
        a(f"v_mov_b32 v{T+5}, s{S_NONCE}")
        a(f"v_mov_b32 v{T+7}, s{S_NONCE}")
        a("s_waitcnt lgkmcnt(0)")
        a(f"v_add_f32 v{T+4}, v{T+2}, v{T+8}")
        a(f"v_add_f32 v{T+6}, v{T+3}, v{T+9}")
        a(f"buffer_store_dwordx4 v[{T+4}:{T+7}], v{T}, s[{SRD_Z}:{SRD_Z+3}], 0 offen sc1"); Sd.issue("xs")
    def xs_loads():
        for jj in range(14):
            if jj % 2 == 0: a(f"s_mov_b32 s{T0+2}, {jj*2048}")
            a(f"buffer_load_dwordx4 v[{R.XL+4*jj}:{R.XL+4*jj+3}], v{R.VA+4}, s[{SRD_Z}:{SRD_Z+3}], s{T0+2} offen offset:{(jj%2)*2048} sc1")
    def xs_issue():
        a(f"s_mul_i32 s{T0}, s{S_M}, {14*2048}")
        a(f"s_add_u32 s{T0}, s{T0}, {WS_XS}")
        a(f"v_lshlrev_b32 v{R.VA+4}, 4, v{R.VA+3}")
        a(f"v_add_u32 v{R.VA+4}, s{T0}, v{R.VA+4}")
        xs_loads()
        for _ in range(14): Sd.issue("xsl")
    def xs_check():
        Sd.wait("xsl")
        skip = a.lab("Lxs_skip")
        a(f"s_cmp_ge_u32 s{S_J}, 14")
        a(f"s_cbranch_scc1 {skip}")
        poll_loop(a, xs_loads, lambda: tag_check([R.XL+4*jj+1 for jj in range(14)] + [R.XL+4*jj+3 for jj in range(14)]), "Lxs")
        a(f"{skip}:")
    def xs_reduce():
        PL = R.XL
        a(f"v_add_f32 v{T}, v{PL}, v{PL+4}")
        a(f"v_add_f32 v{T+1}, v{PL+2}, v{PL+6}")
        for jj in range(2, 14):
            a(f"v_add_f32 v{T}, v{T}, v{PL+4*jj}")
            a(f"v_add_f32 v{T+1}, v{T+1}, v{PL+4*jj+2}")
        a(f"v_mul_f32 v{T}, {f32hex(1/864)}, v{T}")
        a(f"v_mul_f32 v{T+2}, v{T}, v{T}")
        a(f"v_mov_b32 v{T+3}, {f32hex(1/864)}")
        a(f"v_fma_f32 v{T+1}, v{T+1}, v{T+3}, -v{T+2}")
        a(f"v_max_f32 v{T+1}, 0, v{T+1}")
        a(f"v_add_f32 v{T+1}, {f32hex(1e-5)}, v{T+1}")
        a(f"v_rsq_f32 v{T+4}, v{T+1}")
        a(f"v_lshlrev_b32 v{T+6}, 3, v{R.VA+3}")
        a(f"v_mul_f32 v{T+5}, v{T}, v{T+4}")
        a(f"v_mul_f32 v{T+5}, -1.0, v{T+5}")
        a(f"v_add_u32 v{T+6}, {L_ZT}, v{T+6}")
        a(f"ds_write_b64 v{T+6}, v[{T+4}:{T+5}]")
        a(f"s_lshl_b32 s{T0}, {sw}, 6")
        a(f"v_lshrrev_b32 v{T}, 3, v{VLANE}")
        a(f"v_add_u32 v{T}, s{T0}, v{T}")
        a(f"v_lshlrev_b32 v{R.VA+5}, 3, v{T}")
        a(f"v_add_u32 v{R.VA+5}, {L_ZT}, v{R.VA+5}")
        a(f"v_and_b32 v{T+2}, 7, v{VLANE}")
        a(f"v_lshrrev_b32 v{T+3}, 4, v{VLANE}")
        a(f"v_xor_b32 v{T+3}, v{T+3}, v{T+2}")
        a(f"v_lshlrev_b32 v{T+3}, 4, v{T+3}")
        a(f"v_lshl_add_u32 v{R.VA+6}, v{T}, 7, v{T+3}")
        a(f"v_add_u32 v{R.VA+6}, {L_GB}, v{R.VA+6}")
        a(f"v_xor_b32 v{R.VA+7}, 64, v{R.VA+6}")
        a(f"s_lshl_b32 s{T0+1}, s{S_J}, 3")
        a(f"s_sub_u32 s{T0+1}, s{T0+1}, 4")
        a(f"v_add_u32 v{T+5}, s{T0+1}, v{T+2}")
        a(f"v_cmp_gt_i32 vcc, 0, v{T+5}")
        a(f"v_mul_u32_u24 v{T+6}, 4682, v{T+5}")
        a(f"v_lshrrev_b32 v{T+6}, 16, v{T+6}")
        a(f"v_mul_u32_u24 v{T+7}, 14, v{T+6}")
        a(f"v_sub_u32 v{T+7}, v{T+5}, v{T+7}")
        a(f"v_mul_u32_u24 v{T+6}, {ZB_BLK}, v{T+6}")
        a(f"v_lshl_add_u32 v{T+6}, v{T+7}, 4, v{T+6}")
        a(f"s_lshl_b32 s{T0+1}, s{S_M}, 7")
        a(f"s_add_u32 s{T0+1}, s{T0+1}, s{T0}")
        a(f"v_bfe_u32 v{T+7}, v{VLANE}, 3, 2")
        a(f"v_add_u32 v{T+7}, s{T0+1}, v{T+7}")
        a(f"v_bfe_u32 v{T+8}, v{VLANE}, 5, 1")
        a(f"v_lshl_add_u32 v{T+7}, v{T+8}, 3, v{T+7}")
        a(f"v_mul_u32_u24 v{T+7}, 224, v{T+7}")
        a(f"v_add_u32 v{T+6}, v{T+6}, v{T+7}")
        a(f"v_add_u32 v{T+6}, {WS_Z2N}, v{T+6}")
        a(f"v_mov_b32 v{T+7}, {hex(OOB)}")
        a(f"v_cndmask_b32 v{R.VA+8}, v{T+6}, v{T+7}, vcc")
        a("s_waitcnt lgkmcnt(0)")
    def normalise(i0, i1):
        def f():
            D = R.DX
            for i in range(i0, i1):
                a(f"ds_read_b64 v[{R.DW+2*(i-i0)}:{R.DW+2*(i-i0)+1}], v{R.VA+5} offset:{i*64}")
                a(f"ds_read_b128 v[{D+4*(i-i0)}:{D+4*(i-i0)+3}], v{R.VA+6+(i&1)} offset:{i*1024}")
            U = T + 8
            for i in range(i0, i1):
                n = i1 - 1 - i
                a(f"s_waitcnt lgkmcnt({2*n})")
                g = D + 4*(i-i0); rho = R.DW + 2*(i-i0); nm = rho + 1
                for p in range(4):
                    a(f"v_lshlrev_b32 v{U+2*p}, 16, v{g+p}")
                    a(f"v_and_b32 v{U+2*p+1}, 0xffff0000, v{g+p}")
                for e in range(8):
                    a(f"v_fma_f32 v{U+e}, v{U+e}, v{rho}, v{nm}")
                for p in range(4):
                    a(f"v_cvt_pk_bf16_f32 v{g+p}, v{U+2*p}, v{U+2*p+1}")
                a(f"s_mov_b32 s{T0+2}, {(16*(i>>1) + 4*(i&1))*224}")
                a(f"buffer_store_dwordx4 v[{g}:{g+3}], v{R.VA+8}, s[{SRD_Z}:{SRD_Z+3}], s{T0+2} offen sc1"); Sd.issue("z2n")
        return f
    def fz_addr():
        a(f"s_lshl_b32 s{T0}, s{S_M}, 7")
        a(f"s_lshl_b32 s{T0+1}, s{S_J}, 2")
        a(f"s_add_u32 s{T0}, s{T0}, s{T0+1}")
        a(f"s_add_u32 s{T0}, s{T0}, {F_Z}")
    Sd.at_pre("a.t0", p0_issue)
    Sd.at_pre("a.t0", lambda: nonce_fin(a))
    Sd.at_pre("a.t0", rowstats)
    Sd.at_post("a.t4", tabA_issue)
    Sd.at_post("a.t6", tabA_check)
    Sd.at_post("a.t7", tabA_write)
    Sd.at_post("a.E", wc_issue)
    Sd.at_post("a.E", wc_store(0, 5))
    Sd.at_post("b.t0", pub_stats)
    Sd.at_post("b.t2", xs_issue)
    Sd.at_pre("b.t2", lambda: Sd.wait("wcs"))
    Sd.at_post("b.t2", flag_store(fw_addr, "fw"))
    Sd.at_post("b.t3", xs_check)
    Sd.at_post("b.t3", xs_reduce)
    Sd.at_post("b.t4", normalise(0, 3))
    Sd.at_post("b.t5", normalise(3, 6))
    Sd.at_post("b.t6", normalise(6, 8))
    Sd.at_pre("b.t8", lambda: Sd.wait("z2n"))
    Sd.at_post("b.t8", flag_store(fz_addr, "fz"))

class C1:
    ACC, XF, WF, AD = 0, 64, 96, 128
    RSV = 136
    Z1P = 144
    QP = 160
    VTOK, VCQ, VPB = 192, 193, 194
    VZ1 = 195
    CS = 196
    ONEF = 204
    T = 210
    VT15, VQ = 246, 247

CS_POS = int(os.environ.get('CS_POS', '16'))
def p1_consumer(a, cons, psc="sc1", prof=None):
    prof = prof or (lambda i: None)
    C = C1
    ACC, XF, WF, AD, T, VT15, VQ = C.ACC, C.XF, C.WF, C.AD, C.T, C.VT15, C.VQ
    w = S_A
    tmp = T0
    a(f"s_lshr_b32 s{w}, s{S_WAVE}, 1")
    a(f"s_and_b32 s{w+1}, s{S_WAVE}, 1")
    a(f"v_and_b32 v{VT15}, 15, v{VLANE}")
    a(f"v_lshrrev_b32 v{VQ}, 4, v{VLANE}")
    a(f"v_lshrrev_b32 v{T}, 1, v{VT15}")
    a(f"v_xor_b32 v{T}, v{T}, v{VQ}")
    a(f"v_lshlrev_b32 v{T}, 4, v{T}")
    a(f"v_lshl_add_u32 v{T}, v{VT15}, 7, v{T}")
    a(f"s_lshl_b32 s{tmp}, s{w}, 13")
    a(f"v_add_u32 v{AD}, s{tmp}, v{T}")
    a(f"v_xor_b32 v{AD+1}, 64, v{AD}")
    a(f"v_bfe_u32 v{T+1}, v{VLANE}, 2, 2")
    a(f"v_lshl_add_u32 v{T+2}, v{VQ}, 3, v{T+1}")
    a(f"v_lshlrev_b32 v{T+2}, 7, v{T+2}")
    a(f"v_and_b32 v{T+3}, 3, v{VLANE}")
    a(f"v_lshl_add_u32 v{T+2}, v{T+3}, 3, v{T+2}")
    a(f"v_add_u32 v{T+2}, {XPART}, v{T+2}")
    a(f"v_lshrrev_b32 v{T+1}, 1, v{T+1}")
    a(f"v_and_b32 v{T+3}, 1, v{VQ}")
    a(f"v_lshl_or_b32 v{T+1}, v{T+3}, 1, v{T+1}")
    a(f"s_lshl_b32 s{tmp}, s{w+1}, 1")
    a(f"v_xor_b32 v{T+1}, s{tmp}, v{T+1}")
    for i in range(2):
        a(f"v_xor_b32 v{T+3}, {i}, v{T+1}")
        a(f"v_lshl_add_u32 v{AD+2+i}, v{T+3}, 5, v{T+2}")
    for r in range(4):
        a(f"v_add_u32 v{AD+4+r}, {2*SLOT}, v{AD+r}")
    def reads(off):
        def f(j, step, s_):
            slot = (j + off) % NR; r0 = AD + (slot//2)*4; so = (slot % 2)*SLOT
            X = [f"ds_read_b128 v[{XF+s_*16+ta*4}:{XF+s_*16+ta*4+3}], v{r0+step} offset:{so + ta*2048}" for ta in range(4)]
            Wr = []
            for i in range(4):
                d = WF + s_*16 + i*4; o = so + (i//2)*8192 + step*4096
                Wr.append([f"ds_read_b64_tr_b16 v[{d}:{d+1}], v{r0+2+(i%2)} offset:{o}",
                           f"ds_read_b64_tr_b16 v[{d+2}:{d+3}], v{r0+2+(i%2)} offset:{o+512}"])
            return [X[0]] + Wr[0] + Wr[1] + [X[1]] + Wr[2] + Wr[3] + [X[2], X[3]]
        return f
    def mfmas(t, step, s_):
        first = (t == 0 and step == 0)
        r = []
        for ta in range(4):
            for i in range(4):
                acc = ACC + (ta*4+i)*4
                c = "0" if first else f"v[{acc}:{acc+3}]"
                r.append(f"v_mfma_f32_16x16x32_bf16 v[{acc}:{acc+3}], v[{WF+s_*16+i*4}:{WF+s_*16+i*4+3}], v[{XF+s_*16+ta*4}:{XF+s_*16+ta*4+3}], {c}")
        l1, lj = a.lab("Lcs"), a.lab("Lcj")
        def cs(i, k):
            acc = C.CS + 4*k
            c = "0" if first else f"v[{acc}:{acc+3}]"
            return f"v_mfma_f32_16x16x32_bf16 v[{acc}:{acc+3}], v[{WF+s_*16+i*4}:{WF+s_*16+i*4+3}], v[{C.ONEF}:{C.ONEF+3}], {c}"
        blk = [f"s_cmp_eq_u32 s{w}, 1", f"s_cbranch_scc1 {l1}", cs(0, 0), cs(1, 1), f"s_branch {lj}", f"{l1}:", cs(2, 0), cs(3, 1), f"{lj}:"]
        r.insert(CS_POS, "\n".join(blk))
        return r
    def cs_write(off):
        a(f"s_lshl_b32 s{tmp}, s{w}, 8")
        a(f"s_lshl_b32 s{tmp+1}, s{w+1}, 7")
        a(f"s_add_u32 s{tmp}, s{tmp}, s{tmp+1}")
        a(f"s_add_u32 s{tmp}, s{tmp}, {L_CS+off}")
        a(f"v_lshl_add_u32 v{T+2}, v{VQ}, 4, s{tmp}")
        a(f"s_mov_b32 s{tmp+2}, 0x00010001")
        a(f"s_mov_b32 s{tmp+3}, 0x00010001")
        a(f"s_mov_b64 exec, s[{tmp+2}:{tmp+3}]")
        a("s_nop 2")
        a(f"ds_write_b128 v{T+2}, v[{C.CS}:{C.CS+3}]")
        a(f"ds_write_b128 v{T+2}, v[{C.CS+4}:{C.CS+7}] offset:64")
        a("s_mov_b64 exec, -1")
        a("s_waitcnt lgkmcnt(0)")
    for r in range(4): a(f"v_mov_b32 v{C.ONEF+r}, 0x3f803f80")
    a(f"s_lshl_b32 s{tmp}, s{S_M}, 7")
    a(f"s_lshl_b32 s{tmp+1}, s{w}, 6")
    a(f"s_add_u32 s{tmp}, s{tmp}, s{tmp+1}")
    a(f"v_add_u32 v{C.VTOK}, s{tmp}, v{VT15}")
    a(f"v_and_b32 v{T+5}, 1, v{VQ}")
    a(f"v_lshrrev_b32 v{T+6}, 1, v{VQ}")
    a(f"v_lshl_or_b32 v{C.VCQ}, v{T+5}, 1, v{T+6}")
    prof(0)
    kloop(a, cons, "a", 10, reads(0), mfmas, hooks={("post", 0): [lambda: prof(6)]})
    prof(1)
    cs_write(0)
    cons.bar("a.E")
    RSv = C.RSV
    CSv = 64
    PK = 80
    S12 = 84
    E = 92
    KK, ONE2, ONES = 100, 102, 104
    def cs_table(off):
        a(f"v_lshlrev_b32 v{T+2}, 4, v{VQ}")
        a(f"s_lshl_b32 s{tmp}, s{w+1}, 7")
        a(f"s_add_u32 s{tmp}, s{tmp}, {L_CS+off}")
        a(f"v_add_u32 v{T+2}, s{tmp}, v{T+2}")
        for i in range(4):
            a(f"ds_read_b128 v[{CSv+4*i}:{CSv+4*i+3}], v{T+2} offset:{(i//2)*256 + (i%2)*64}")
    def lnfold(ta, i):
        acc = ACC + (ta*4+i)*4
        for h in range(2):
            a(f"v_pk_mul_f32 v[{E+2*h}:{E+2*h+1}], v[{CSv+4*i+2*h}:{CSv+4*i+2*h+1}], v[{RSv+2*ta}:{RSv+2*ta+1}] op_sel:[0,1] op_sel_hi:[1,1]")
        for h in range(2):
            a(f"v_pk_fma_f32 v[{acc+2*h}:{acc+2*h+1}], v[{acc+2*h}:{acc+2*h+1}], v[{RSv+2*ta}:{RSv+2*ta+1}], v[{E+2*h}:{E+2*h+1}] op_sel:[0,0,0] op_sel_hi:[1,0,1]")
    def pack_pair(ta, pr, pk):
        for bi in range(2):
            acc = ACC + (ta*4+2*pr+bi)*4
            a(f"v_cvt_pk_bf16_f32 v{pk+2*bi}, v{acc}, v{acc+1}")
            a(f"v_cvt_pk_bf16_f32 v{pk+2*bi+1}, v{acc+2}, v{acc+3}")
        a("s_nop 1")
        a(f"v_permlane16_swap_b32 v{pk}, v{pk+2}")
        a(f"v_permlane16_swap_b32 v{pk+1}, v{pk+3}")
    def blk_addr(dst, sunit, div, magic, blkb, rowb, base):
        a(f"v_add_u32 v{T+8}, s{sunit}, v{C.VCQ}")
        a(f"v_mul_u32_u24 v{T+9}, {magic}, v{T+8}")
        a(f"v_lshrrev_b32 v{T+9}, 16, v{T+9}")
        a(f"v_mul_u32_u24 v{T+10}, {div}, v{T+9}")
        a(f"v_sub_u32 v{T+8}, v{T+8}, v{T+10}")
        a(f"v_mul_u32_u24 v{T+9}, {blkb}, v{T+9}")
        a(f"v_lshl_add_u32 v{T+8}, v{T+8}, 4, v{T+9}")
        a(f"v_mul_u32_u24 v{T+9}, {rowb}, v{C.VTOK}")
        a(f"v_add_u32 v{T+8}, v{T+8}, v{T+9}")
        a(f"v_add_u32 v{dst}, {base}, v{T+8}")
    for u in range(112): assert (u*4682) >> 16 == u//14
    for u in range(256): assert (u*6554) >> 16 == u//10
    a(f"s_lshl_b32 s{tmp}, s{w}, 6")
    a(f"v_add_u32 v{T}, s{tmp}, v{VT15}")
    a(f"v_lshlrev_b32 v{T+1}, 3, v{T}")
    a(f"v_add_u32 v{T+1}, {L_RS}, v{T+1}")
    for ta in range(4):
        a(f"ds_read_b64 v[{RSv+2*ta}:{RSv+2*ta+1}], v{T+1} offset:{ta*128}")
    cs_table(0)
    a(f"v_mov_b32 v{KK}, {f32hex(GELU_K1)}")
    a(f"v_mov_b32 v{KK+1}, {f32hex(GELU_K0)}")
    a(f"v_mov_b32 v{ONE2}, 1.0")
    a(f"v_mov_b32 v{ONE2+1}, 1.0")
    a(f"v_mov_b32 v{ONES}, 0x3f803f80")
    for r in range(8): a(f"v_mov_b32 v{S12+r}, 0")
    VGA = T + 3
    a(f"v_lshrrev_b32 v{T+6}, 1, v{VT15}")
    a(f"s_lshl_b32 s{tmp}, s{w+1}, 2")
    a(f"v_or_b32 v{T+5}, s{tmp}, v{C.VCQ}")
    a(f"v_xor_b32 v{T+6}, v{T+6}, v{T+5}")
    a(f"v_lshlrev_b32 v{T+6}, 4, v{T+6}")
    a(f"v_lshl_add_u32 v{VGA}, v{T}, 7, v{T+6}")
    a(f"v_add_u32 v{VGA}, {L_GB}, v{VGA}")
    a(f"s_cmp_lt_u32 s{S_J}, 13")
    a(f"s_cselect_b32 s{tmp}, {hex(WS_BYTES)}, 0")
    mk_srd(a, SRD_M, P_WS, f"s{tmp}")
    a("s_waitcnt lgkmcnt(0)")
    lz, ln = a.lab("La_z"), a.lab("La_n")
    for ta in range(4):
        for i in range(2): lnfold(ta, i)
    a(f"s_add_u32 s{tmp}, s{S_J}, s{w+1}")
    a(f"s_cmp_lg_u32 s{tmp}, 0")
    a(f"s_cbranch_scc1 {lz}")
    a(f"s_mov_b32 s{tmp}, 104")
    blk_addr(E+4, tmp, 14, 4682, ZB_BLK, 224, WS_Z1)
    for ta in range(4):
        pk = C.QP + 4*ta
        pack_pair(ta, 0, pk)
        a(f"buffer_store_dwordx4 v[{pk}:{pk+3}], v{E+4}, s[{SRD_M}:{SRD_M+3}], 0 offen {psc}")
        a(f"v_add_u32 v{E+4}, {16*224}, v{E+4}")
    a(f"s_branch {ln}")
    a(f"{lz}:")
    for ta in range(4):
        for bi in range(2):
            acc = ACC + (ta*4+bi)*4; p = PK + 2*bi
            for h in range(2):
                a(f"v_pk_mul_f32 v[{E+2*h}:{E+2*h+1}], v[{acc+2*h}:{acc+2*h+1}], v[{acc+2*h}:{acc+2*h+1}]")
            for h in range(2):
                a(f"v_pk_fma_f32 v[{E+2*h}:{E+2*h+1}], v[{E+2*h}:{E+2*h+1}], v[{KK}:{KK+1}], v[{KK}:{KK+1}] op_sel:[0,0,1] op_sel_hi:[1,0,1]")
            for h in range(2):
                a(f"v_pk_mul_f32 v[{E+2*h}:{E+2*h+1}], v[{E+2*h}:{E+2*h+1}], v[{acc+2*h}:{acc+2*h+1}]")
            for r in range(4): a(f"v_exp_f32 v{E+r}, v{E+r}")
            a("s_nop 0")
            for h in range(2):
                a(f"v_pk_add_f32 v[{E+2*h}:{E+2*h+1}], v[{E+2*h}:{E+2*h+1}], v[{ONE2}:{ONE2+1}]")
            for r in range(4): a(f"v_rcp_f32 v{E+r}, v{E+r}")
            a("s_nop 0")
            for h in range(2):
                a(f"v_pk_mul_f32 v[{E+2*h}:{E+2*h+1}], v[{E+2*h}:{E+2*h+1}], v[{acc+2*h}:{acc+2*h+1}]")
            a(f"v_cvt_pk_bf16_f32 v{p}, v{E}, v{E+1}")
            a(f"v_cvt_pk_bf16_f32 v{p+1}, v{E+2}, v{E+3}")
        for p in range(PK, PK+4):
            a(f"v_dot2c_f32_bf16 v{S12+2*ta}, v{p}, v{ONES}")
            a(f"v_dot2c_f32_bf16 v{S12+2*ta+1}, v{p}, v{p}")
        a(f"v_permlane16_swap_b32 v{PK}, v{PK+2}")
        a(f"v_permlane16_swap_b32 v{PK+1}, v{PK+3}")
        a(f"ds_write_b128 v{VGA}, v[{PK}:{PK+3}] offset:{ta*2048}")
    a(f"{ln}:")
    a("s_nop 2")
    red_q(a, list(range(S12, S12+8)), list(range(E, E+8)))
    a(f"v_lshlrev_b32 v{T+1}, 3, v{T}")
    a(f"s_lshl_b32 s{tmp}, s{w+1}, 10")
    a(f"s_add_u32 s{tmp}, s{tmp}, {L_ST}")
    a(f"v_add_u32 v{T+1}, s{tmp}, v{T+1}")
    for ta in range(4):
        a(f"ds_write_b64 v{T+1}, v[{S12+2*ta}:{S12+2*ta+1}] offset:{ta*128}")
    for ta in range(4):
        for i in range(2, 4): lnfold(ta, i)
        pack_pair(ta, 1, C.Z1P + 4*ta)
    a(f"s_lshl_b32 s{tmp}, s{S_J}, 3")
    a(f"s_lshl_b32 s{tmp+1}, s{w+1}, 2")
    a(f"s_add_u32 s{tmp}, s{tmp}, s{tmp+1}")
    a(f"s_min_u32 s{tmp}, s{tmp}, 104")
    blk_addr(C.VZ1, tmp, 14, 4682, ZB_BLK, 224, WS_Z1)
    a("s_waitcnt lgkmcnt(0)")
    prof(2)
    hooks = {}
    def z1_store(ta):
        def f():
            a(f"buffer_store_dwordx4 v[{C.Z1P+4*ta}:{C.Z1P+4*ta+3}], v{C.VZ1}, s[{SRD_M}:{SRD_M+3}], 0 offen {psc}"); cons.issue("z1")
            if ta < 3: a(f"v_add_u32 v{C.VZ1}, {16*224}, v{C.VZ1}")
        return f
    for ta in range(4): hooks[("pre", 1 + 2*ta)] = [z1_store(ta)]
    kloop(a, cons, "b", 10, reads(10), mfmas, hooks=hooks)
    prof(3)
    cs_write(512)
    cons.bar("b.E")
    cs_table(512)
    a(f"s_cmp_lt_u32 s{S_J}, 15")
    a(f"s_cselect_b32 s{tmp}, {hex(WS_BYTES)}, 0")
    mk_srd(a, SRD_M, P_WS, f"s{tmp}")
    VQA = T + 11
    for pr in range(2):
        a(f"s_lshl_b32 s{tmp}, s{S_J}, 4")
        a(f"s_lshl_b32 s{tmp+1}, s{w+1}, 2")
        a(f"s_add_u32 s{tmp}, s{tmp}, s{tmp+1}")
        a(f"s_add_u32 s{tmp}, s{tmp}, {8*pr}")
        blk_addr(VQA+pr, tmp, 10, 6554, QB_BLK, 160, WS_QB)
    a("s_waitcnt lgkmcnt(0)")
    for ta in range(4):
        a(f"s_mov_b32 s{tmp}, {ta*16*160}")
        for pr in range(2):
            lnfold(ta, 2*pr); lnfold(ta, 2*pr+1)
            pk = C.QP + (ta*2+pr)*4
            pack_pair(ta, pr, pk)
            a(f"buffer_store_dwordx4 v[{pk}:{pk+3}], v{VQA+pr}, s[{SRD_M}:{SRD_M+3}], s{tmp} offen {psc}"); cons.issue("qkv")
    prof(4)
```

```python
from fw2 import *
from k1 import red_q

P2_R, P2_SLOT, P2_WB, P2_NS = 5, 22528, 8192, 32
L_AT = 114688
L_Q, L_K, L_V = L_AT, L_AT + 10240, L_AT + 10240 + 14336
L_DUMMY = L_AT + 10240 + 2*14336

def flag_poll(a, role, vaddr, vland, srd, lab, nload=1, mask_fn=None):
    def ld(): a(f"buffer_load_dword v{vland}, v{vaddr}, s[{srd}:{srd+3}], 0 offen sc1")
    ld(); role.issue("poll")
    role.wait("poll")
    def chk():
        a(f"v_cmp_ne_u32 vcc, s{S_NONCE}, v{vland}")
    poll_loop(a, ld, chk, lab)

class D2:
    VX, VL, VF, VT = 30, 31, 32, 33
    S_MX, S_MW, S_XO, S_WO = S_A+8, S_A+9, S_A+10, S_A+11

def p2_dma(D):
    a = D.a; w = f"s{S_LW}"; R = D2; T = 80
    def setup():
        mk_srd(a, SRD_X, P_WSP, 2048*4096)
        a(f"v_lshrrev_b32 v{T}, 3, v{VLANE}")
        a(f"v_lshrrev_b32 v{T+1}, 4, v{VLANE}")
        a(f"s_lshl_b32 s{T0}, {w}, 2")
        a(f"v_add_u32 v{T+1}, s{T0}, v{T+1}")
        a(f"v_and_b32 v{T+2}, 7, v{VLANE}")
        a(f"v_xor_b32 v{T+1}, v{T+1}, v{T+2}")
        a(f"s_lshl_b32 s{T0}, s{S_TB}, 6")
        a(f"s_lshl_b32 s{T0+1}, {w}, 3")
        a(f"s_add_u32 s{T0}, s{T0}, s{T0+1}")
        a(f"v_add_u32 v{T}, s{T0}, v{T}")
        a(f"v_lshlrev_b32 v{T}, 12, v{T}")
        a(f"v_lshl_add_u32 v{R.VX}, v{T+1}, 4, v{T}")
        a(f"v_lshlrev_b32 v{R.VL}, 4, v{VLANE}")
        a(f"s_lshl_b32 s{R.S_MX}, {w}, 10")
        a(f"s_mul_i32 s{R.S_MW}, {w}, 7168")
        a(f"s_mul_i32 s{R.S_WO}, s{S_FB}, {ZB_BLK}")
        a(f"s_add_u32 s{R.S_WO}, s{R.S_WO}, {WS_Z2N}")
        a(f"s_add_u32 s{R.S_WO}, s{R.S_WO}, s{R.S_MW}")
    def poll_fz():
        a(f"s_mul_i32 s{T0}, s{S_FB}, 112")
        a(f"s_add_u32 s{T0}, s{T0}, 32")
        a(f"s_add_u32 s{T0+1}, s{T0}, 111")
        a(f"s_lshr_b32 s{T0}, s{T0}, 6")
        a(f"s_lshr_b32 s{T0+1}, s{T0+1}, 6")
        a(f"s_min_u32 s{T0+1}, s{T0+1}, 13")
        a(f"v_and_b32 v{T}, 3, v{VLANE}")
        a(f"v_add_u32 v{T}, s{T0}, v{T}")
        a(f"v_min_u32 v{T}, s{T0+1}, v{T}")
        a(f"v_lshrrev_b32 v{T+1}, 2, v{VLANE}")
        a(f"v_lshlrev_b32 v{T+1}, 7, v{T+1}")
        a(f"v_lshl_add_u32 v{T}, v{T}, 2, v{T+1}")
        a(f"v_add_u32 v{R.VF}, {F_Z}, v{T}")
        flag_poll(a, D, R.VF, R.VT, SRD_WS, "Lfz")
    def xi(t, tag):
        base = (t % P2_R)*P2_SLOT
        for k in range(4):
            a(f"s_add_u32 m0, s{R.S_MX}, {base + k*2048}")
            a(f"s_mov_b32 s{T0}, {t*128 + k*16*4096}")
            a(f"buffer_load_dwordx4 v{R.VX}, s[{SRD_X}:{SRD_X+3}], s{T0} offen lds"); D.issue(tag)
    def wi(t, tag):
        base = (t % P2_R)*P2_SLOT + P2_WB
        for k in range(7):
            a(f"s_add_u32 m0, s{R.S_MW}, {base + k*1024}")
            a(f"s_add_u32 s{T0}, s{R.S_WO}, {t*14336 + k*1024}")
            a(f"buffer_load_dwordx4 v{R.VL}, s[{SRD_WS}:{SRD_WS+3}], s{T0} offen sc1 lds"); D.issue(tag)
    def mk(kind, t):
        def f():
            if kind == "X":
                if t == 0: setup()
                xi(t, ("cX", t))
            elif kind == "W":
                if t == 0: poll_fz()
                wi(t, ("cW", t))
            else:
                xi(t, ("c", t)); wi(t, ("c", t))
        return f
    for t in range(P2_R):
        lo = t*P2_SLOT
        D.slices.append(Slice(("cX", t), lo, lo + P2_WB, mk("X", t)))
    for t in range(P2_R):
        lo = t*P2_SLOT + P2_WB
        D.slices.append(Slice(("cW", t), lo, lo + P2_SLOT - P2_WB, mk("W", t), minbar={0: "b.E", 3: "c.t0"}.get(t)))
    for t in range(P2_R, P2_NS):
        lo = (t % P2_R)*P2_SLOT
        D.slices.append(Slice(("c", t), lo, lo + P2_SLOT, mk("XW", t)))
    def tags(t): return [("cX", t), ("cW", t)] if t < P2_R else [("c", t)]
    for t in range(P2_NS):
        D.bars.append((f"c.t{t}", tags(t)[-1], tags(t-1) if t else []))
    D.bars.append(("c.E", None, tags(P2_NS-1)))

class C2:
    ACC, XF, WF = 0, 32, 48
    AX, AW = 80, 86
    Z1 = 100
    BS = 116
    VH = 118
    T = 124

def p2_consumer(a, cons, prof=None, zt=22, ptick=2):
    prof = prof or (lambda i: None)
    C = C2; ACC, XF, WF, AX, AW, T = C.ACC, C.XF, C.WF, C.AX, C.AW, C.T
    w = S_A; tmp = T0
    VT15, VQ = 246, 247
    a(f"v_lshrrev_b32 v{T+2}, 1, v{VT15}")
    a(f"v_xor_b32 v{T+2}, v{T+2}, v{VQ}")
    a(f"s_lshl_b32 s{tmp}, s{w}, 5")
    a(f"v_add_u32 v{T+3}, s{tmp}, v{VT15}")
    a(f"v_lshlrev_b32 v{T+3}, 7, v{T+3}")
    a(f"v_lshl_add_u32 v{AX}, v{T+2}, 4, v{T+3}")
    a(f"v_xor_b32 v{AX+1}, 64, v{AX}")
    a(f"v_lshrrev_b32 v{T+3}, 1, v{VQ}")
    a(f"v_lshlrev_b32 v{T+3}, 4, v{T+3}")
    a(f"v_and_b32 v{T+4}, 1, v{VQ}")
    a(f"v_lshl_add_u32 v{T+3}, v{T+4}, 2, v{T+3}")
    a(f"v_lshrrev_b32 v{T+4}, 2, v{VT15}")
    a(f"v_add_u32 v{T+3}, v{T+3}, v{T+4}")
    a(f"v_mul_u32_u24 v{T+3}, 224, v{T+3}")
    a(f"v_and_b32 v{T+4}, 3, v{VT15}")
    a(f"v_lshl_add_u32 v{T+3}, v{T+4}, 3, v{T+3}")
    a(f"s_lshl_b32 s{tmp}, s{w+1}, 7")
    a(f"s_add_u32 s{tmp}, s{tmp}, {P2_WB}")
    a(f"v_add_u32 v{AW}, s{tmp}, v{T+3}")
    for st in (1, 2):
        a(f"v_add_u32 v{AX+2*st}, {2*P2_SLOT*st}, v{AX}")
        a(f"v_add_u32 v{AX+2*st+1}, {2*P2_SLOT*st}, v{AX+1}")
        a(f"v_add_u32 v{AW+st}, {2*P2_SLOT*st}, v{AW}")
    def reads(j, step, st):
        slot = j % P2_R; aset = slot // 2; so = (slot % 2)*P2_SLOT
        X = [f"ds_read_b128 v[{XF+st*8+ta*4}:{XF+st*8+ta*4+3}], v{AX+2*aset+step} offset:{so + ta*2048}" for ta in range(2)]
        Wr = []
        for b in range(4):
            d = WF + st*16 + b*4; o = so + step*7168 + b*32
            Wr += [f"ds_read_b64_tr_b16 v[{d}:{d+1}], v{AW+aset} offset:{o}",
                   f"ds_read_b64_tr_b16 v[{d+2}:{d+3}], v{AW+aset} offset:{o+1792}"]
        return [X[0]] + Wr[:4] + [X[1]] + Wr[4:]
    def mfmas(t, step, st):
        first = (t == 0 and step == 0)
        r = []
        for b in range(4):
            for ta in range(2):
                acc = ACC + (ta*4+b)*4
                c = "0" if first else f"v[{acc}:{acc+3}]"
                r.append(f"v_mfma_f32_16x16x32_bf16 v[{acc}:{acc+3}], v[{WF+st*16+b*4}:{WF+st*16+b*4+3}], v[{XF+st*8+ta*4}:{XF+st*8+ta*4+3}], {c}")
        return r
    def z1_loads():
        a(f"s_lshl_b32 s{tmp}, s{S_TB}, 6")
        a(f"s_lshl_b32 s{tmp+1}, s{w}, 5")
        a(f"s_add_u32 s{tmp}, s{tmp}, s{tmp+1}")
        a(f"v_add_u32 v{T+5}, s{tmp}, v{VT15}")
        a(f"v_and_b32 v{T+6}, 1, v{VQ}")
        a(f"v_lshrrev_b32 v{T+7}, 1, v{VQ}")
        a(f"v_lshl_or_b32 v{T+6}, v{T+6}, 1, v{T+7}")
        a(f"s_lshl_b32 s{tmp}, s{w+1}, 7")
        a(f"v_lshl_add_u32 v{T+6}, v{T+6}, 4, s{tmp}")
        a(f"v_and_b32 v{T+7}, s{w+1}, v{VQ}")
        a(f"v_cmp_eq_u32 vcc, 1, v{T+7}")
        a(f"v_mul_u32_u24 v{T+8}, 224, v{T+5}")
        a(f"v_add_u32 v{T+8}, v{T+8}, v{T+6}")
        a(f"v_mov_b32 v{T+10}, {hex(OOB)}")
        a(f"v_add_u32 v{T+9}, 64, v{T+8}")
        a(f"v_cndmask_b32 v{T+9}, v{T+9}, v{T+10}, vcc")
        a(f"v_mul_u32_u24 v{C.VH}, {H_PITCH}, v{T+5}")
        a(f"v_add_u32 v{C.VH}, v{C.VH}, v{T+6}")
        a(f"v_add_u32 v{C.VH+1}, 64, v{C.VH}")
        a(f"v_cndmask_b32 v{C.VH+1}, v{C.VH+1}, v{T+10}, vcc")
        a(f"s_mul_i32 s{tmp}, s{S_FB}, {ZB_BLK}")
        a(f"s_add_u32 s{tmp}, s{tmp}, {WS_Z1}")
        a(f"s_add_u32 s{tmp+1}, s{tmp}, {16*224}")
        for ta in range(2):
            for pr in range(2):
                z = C.Z1 + (ta*2+pr)*4
                a(f"buffer_load_dwordx4 v[{z}:{z+3}], v{T+8+pr}, s[{SRD_WS}:{SRD_WS+3}], s{tmp+ta} offen sc1"); cons.issue("z1l")
        mk_srd(a, SRD_M, P_BSP, 4096)
        a(f"v_lshlrev_b32 v{T+7}, 1, v{T+5}")
        a(f"buffer_load_ushort v{C.BS}, v{T+7}, s[{SRD_M}:{SRD_M+3}], 0 offen"); cons.issue("z1l")
        a(f"buffer_load_ushort v{C.BS+1}, v{T+7}, s[{SRD_M}:{SRD_M+3}], 0 offen offset:32"); cons.issue("z1l")
    hooks = {("pre", zt): [z1_loads], ("pre", ptick): [lambda: cons.wait(["z1", "qkv"])]}
    prof(0)
    kloop(a, cons, "c", P2_NS, reads, mfmas, hooks=hooks)
    prof(1)
    cons.bar("c.E")
    KK, ONE2 = 120, 122
    U, E = 128, 136
    a(f"v_mov_b32 v{KK}, {f32hex(GELU_K1)}")
    a(f"v_mov_b32 v{KK+1}, {f32hex(GELU_K0)}")
    a(f"v_mov_b32 v{ONE2}, 1.0")
    a(f"v_mov_b32 v{ONE2+1}, 1.0")
    a(f"s_mul_i32 s{tmp}, s{S_FB}, 224")
    a(f"s_add_u32 s{tmp}, s{tmp}, {WS_H}")
    a(f"s_add_u32 s{tmp+1}, s{tmp}, {16*H_PITCH}")
    cons.wait("z1l")
    a(f"v_lshlrev_b32 v{C.BS}, 16, v{C.BS}")
    a(f"v_lshlrev_b32 v{C.BS+1}, 16, v{C.BS+1}")
    for ta in range(2):
        for pr in range(2):
            z = C.Z1 + (ta*2+pr)*4
            a0 = ACC + (ta*4+2*pr)*4; a1 = a0 + 4
            for r in range(4): a(f"v_permlane16_swap_b32 v{a0+r}, v{a1+r}")
            for p in range(4):
                a(f"v_lshlrev_b32 v{U+2*p}, 16, v{z+p}")
                a(f"v_and_b32 v{U+2*p+1}, 0xffff0000, v{z+p}")
            for h in range(4):
                a(f"v_pk_mul_f32 v[{E+2*h}:{E+2*h+1}], v[{U+2*h}:{U+2*h+1}], v[{U+2*h}:{U+2*h+1}]")
            for h in range(4):
                a(f"v_pk_fma_f32 v[{E+2*h}:{E+2*h+1}], v[{E+2*h}:{E+2*h+1}], v[{KK}:{KK+1}], v[{KK}:{KK+1}] op_sel:[0,0,1] op_sel_hi:[1,0,1]")
            for h in range(4):
                a(f"v_pk_mul_f32 v[{E+2*h}:{E+2*h+1}], v[{E+2*h}:{E+2*h+1}], v[{U+2*h}:{U+2*h+1}]")
            for r in range(8): a(f"v_exp_f32 v{E+r}, v{E+r}")
            for r in range(8): a(f"v_add_f32 v{a0+r}, v{a0+r}, v{C.BS+ta}")
            for h in range(4):
                a(f"v_pk_add_f32 v[{E+2*h}:{E+2*h+1}], v[{E+2*h}:{E+2*h+1}], v[{ONE2}:{ONE2+1}]")
            for r in range(8): a(f"v_rcp_f32 v{E+r}, v{E+r}")
            for h in range(4):
                a(f"v_pk_mul_f32 v[{U+2*h}:{U+2*h+1}], v[{U+2*h}:{U+2*h+1}], v[{a0+2*h}:{a0+2*h+1}]")
            for h in range(4):
                a(f"v_pk_mul_f32 v[{U+2*h}:{U+2*h+1}], v[{U+2*h}:{U+2*h+1}], v[{E+2*h}:{E+2*h+1}]")
            for p in range(4):
                a(f"v_cvt_pk_bf16_f32 v{z+p}, v{U+2*p}, v{U+2*p+1}")
            a(f"buffer_store_dwordx4 v[{z}:{z+3}], v{C.VH+pr}, s[{SRD_WS}:{SRD_WS+3}], s{tmp+ta} offen sc1"); cons.issue("h")
    prof(2)

class A2:
    VL, VLA, VLB = 10, 11, 12
    AQ, AK, AV = 14, 16, 19
    AO0, AO1 = 20, 22
    BI = 24
    ONE = 36
    MQ0, MQ1 = 40, 41
    CS = 42
    OA = 44
    U = 50
    T = 140
    VF, VT = 150, 151
    VFW, FW = 154, 156

def p2_side(Sd, t_fp=1, t_poll=6, t_att=9):
    a = Sd.a; R = A2; T = R.T; sw = f"s{S_LW}"
    def fp_addr():
        a(f"s_lshl_b32 s{T0}, s{S_M}, 7")
        a(f"s_lshl_b32 s{T0+1}, s{S_J}, 2")
        a(f"s_add_u32 s{T0}, s{T0}, s{T0+1}")
        a(f"s_add_u32 s{T0}, s{T0}, {F_P}")
    def setup():
        a(f"s_lshr_b32 s{T0}, s{S_TB}, 1")
        a(f"s_and_b32 s{T0+1}, s{S_TB}, 1")
        a(f"s_xor_b32 s{T0+1}, s{T0+1}, 1")
        a(f"s_sub_u32 s{T0+1}, s{T0}, s{T0+1}")
        a(f"s_max_i32 s{T0+1}, s{T0+1}, 0")
        a(f"v_bfe_u32 v{T}, v{VLANE}, 4, 1")
        a(f"v_cmp_eq_u32 vcc, 1, v{T}")
        a(f"v_mov_b32 v{T+1}, s{T0}")
        a(f"v_mov_b32 v{T+2}, s{T0+1}")
        a(f"v_cndmask_b32 v{T+1}, v{T+1}, v{T+2}, vcc")
        a(f"v_lshlrev_b32 v{T+1}, 7, v{T+1}")
        a(f"v_and_b32 v{T+2}, 15, v{VLANE}")
        a(f"v_lshl_add_u32 v{T+1}, v{T+2}, 2, v{T+1}")
        a(f"v_add_u32 v{R.VF}, {F_P}, v{T+1}")
        a(f"v_lshlrev_b32 v{R.VL}, 4, v{VLANE}")
        a(f"s_cmp_eq_u32 s{S_TB}, 0")
        a(f"s_cselect_b32 s{T0}, {hex(OOB)}, 0")
        a(f"v_or_b32 v{R.VLA}, s{T0}, v{R.VL}")
        a(f"v_cmp_gt_u32 vcc, 32, v{VLANE}")
        a(f"v_cndmask_b32 v{R.VLB}, v{R.VL}, v{R.VLA}, vcc")
        a(f"v_and_b32 v{T}, 15, v{VLANE}")
        a(f"v_lshrrev_b32 v{T+1}, 4, v{VLANE}")
        a(f"v_cmp_gt_u32 vcc, 3, v{T+1}")
        a(f"v_cndmask_b32 v{T+2}, 0, v{T+1}, vcc")
        a(f"v_cndmask_b32 v{R.MQ0}, 0, -1, vcc")
        a(f"v_cmp_gt_u32 vcc, 2, v{T+1}")
        a(f"s_lshl_b32 s{T0}, {sw}, 5")
        a(f"v_cndmask_b32 v{R.MQ1}, 0, -1, vcc")
        a(f"v_add_u32 v{T+3}, s{T0}, v{T}")
        a(f"v_mul_u32_u24 v{T+3}, 160, v{T+3}")
        a(f"v_lshl_add_u32 v{T+4}, v{T+2}, 4, v{T+3}")
        for g in range(2): a(f"v_add_u32 v{R.AQ+g}, {L_Q + g*2560}, v{T+4}")
        for g in range(3): a(f"v_add_u32 v{R.AK+g}, {L_K + g*2560}, v{T+4}")
        a(f"v_lshl_add_u32 v{T+4}, v{T+1}, 3, v{T+3}")
        a(f"v_cmp_eq_u32 vcc, 0, v{T+1}")
        a(f"v_lshlrev_b32 v{T+5}, 3, v{VLANE}")
        a(f"v_add_u32 v{T+5}, {L_DUMMY}, v{T+5}")
        for g in range(2):
            a(f"v_add_u32 v{R.AO0+g}, {L_Q + g*2560}, v{T+4}")
            a(f"v_add_u32 v{T+6}, {L_Q + g*2560 + 32}, v{T+4}")
            a(f"v_cndmask_b32 v{R.AO1+g}, v{T+5}, v{T+6}, vcc")
        a(f"v_lshrrev_b32 v{T+4}, 2, v{T}")
        a(f"v_lshl_add_u32 v{T+4}, v{T+1}, 2, v{T+4}")
        a(f"v_add_u32 v{T+4}, s{T0}, v{T+4}")
        a(f"v_mul_u32_u24 v{T+4}, 160, v{T+4}")
        a(f"v_and_b32 v{T+5}, 3, v{T}")
        a(f"v_lshl_add_u32 v{T+4}, v{T+5}, 3, v{T+4}")
        a(f"v_add_u32 v{R.AV}, {L_V}, v{T+4}")
        a(f"v_lshlrev_b32 v{T+4}, 2, v{T+1}")
        a(f"v_sub_u32 v{T+4}, v{T}, v{T+4}")
        a(f"v_mov_b32 v{T+6}, {f32hex(-1e9)}")
        for blk in range(2):
            for r in range(4):
                a(f"v_add_u32 v{T+5}, {16 - 16*blk - r}, v{T+4}")
                a(f"v_and_b32 v{T+7}, 0xfffffff1, v{T+5}")
                a(f"v_cmp_eq_u32 vcc, 0, v{T+7}")
                a("s_nop 0")
                a(f"v_cndmask_b32 v{R.BI+4*blk+r}, v{T+6}, 0, vcc")
        a(f"s_or_b32 s{T0}, s{S_TB}, {sw}")
        a(f"s_cmp_eq_u32 s{T0}, 0")
        a(f"s_cselect_b64 vcc, -1, 0")
        for r in range(4): a(f"v_cndmask_b32 v{R.BI+8+r}, v{R.BI+r}, v{T+6}, vcc")
        for r in range(4): a(f"v_mov_b32 v{R.ONE+r}, 0x3f803f80")
        a(f"v_mov_b32 v{R.CS}, {f32hex(20**-0.5*LOG2E)}")
        a(f"s_lshl_b32 s{T0}, s{S_TB}, 6")
        a(f"s_lshl_b32 s{T0+1}, {sw}, 5")
        a(f"s_add_u32 s{T0}, s{T0}, s{T0+1}")
        a(f"s_mul_i32 s{T0}, s{T0}, 1280")
        a(f"s_mul_i32 s{T0+1}, s{S_FB}, 160")
        a(f"s_add_u32 s{T0}, s{T0}, s{T0+1}")
        a(f"s_add_u32 s{T0}, s{T0}, {WS_O}")
        for i in range(5):
            a(f"v_add_u32 v{T}, {64*i}, v{VLANE}")
            a(f"v_mul_u32_u24 v{T+1}, 6554, v{T}")
            a(f"v_lshrrev_b32 v{T+1}, 16, v{T+1}")
            a(f"v_mul_u32_u24 v{T+2}, 10, v{T+1}")
            a(f"v_sub_u32 v{T+2}, v{T}, v{T+2}")
            a(f"v_mul_u32_u24 v{T+1}, 1280, v{T+1}")
            a(f"v_lshl_add_u32 v{T+1}, v{T+2}, 4, v{T+1}")
            a(f"v_add_u32 v{R.OA+i}, s{T0}, v{T+1}")
    for u in range(320): assert (u*6554) >> 16 == u//10
    def poll_fp():
        flag_poll(a, Sd, R.VF, R.VT, SRD_WS, "Lfp")
    def fw_ld(): a(f"buffer_load_dwordx4 v[{R.FW}:{R.FW+3}], v{R.VFW}, s[{SRD_WS}:{SRD_WS+3}], 0 offen sc1")
    def fw_issue():
        a(f"v_lshlrev_b32 v{R.VFW}, 4, v{VLANE}")
        a(f"v_add_u32 v{R.VFW}, {F_W}, v{R.VFW}")
        fw_ld(); Sd.issue("fwp")
    def fw_check():
        Sd.wait("fwp")
        def chk():
            a(f"v_xor_b32 v{T}, s{S_NONCE}, v{R.FW}")
            for r in range(1, 4):
                a(f"v_xor_b32 v{T+1}, s{S_NONCE}, v{R.FW+r}")
                a(f"v_or_b32 v{T}, v{T}, v{T+1}")
            a(f"v_cmp_ne_u32 vcc, 0, v{T}")
        poll_loop(a, fw_ld, chk, "Lfw")
    def ref_addr():
        a(f"s_mov_b32 s{T0+1}, {F_REF}")
        a(f"s_cmp_eq_u32 s{S_WG}, 0")
        a(f"s_cselect_b32 s{T0}, s{T0+1}, {hex(OOB)}")
    def stage():
        S0, S1, S2 = S_A+2, S_A+3, S_A+4
        a(f"s_mul_i32 s{T0}, s{S_FB}, {QB_BLK}")
        a(f"s_mul_i32 s{T0+1}, s{S_TB}, {64*160}")
        a(f"s_add_u32 s{S0}, s{T0}, s{T0+1}")
        a(f"s_lshl_b32 s{T0+2}, {sw}, 10")
        a(f"s_add_u32 s{S0}, s{S0}, s{T0+2}")
        if WS_QB: a(f"s_add_u32 s{S0}, s{S0}, {WS_QB}")
        a(f"s_add_u32 s{S1}, s{S0}, {8*QB_BLK - 2560}")
        a(f"s_add_u32 s{S2}, s{S0}, {16*QB_BLK - 2560}")
        for k in range(5):
            a(f"s_add_u32 m0, s{T0+2}, {L_Q + k*2048}")
            a(f"s_add_u32 s{T0}, s{S0}, {k*2048}")
            a(f"buffer_load_dwordx4 v{R.VL}, s[{SRD_WS}:{SRD_WS+3}], s{T0} offen sc1 lds"); Sd.issue("stg")
        for (sb, lb) in ((S1, L_K), (S2, L_V)):
            for k in range(7):
                if k == 0: v = R.VLA
                elif k == 1:
                    a(f"s_cmp_eq_u32 {sw}, 0")
                    a(f"s_cselect_b64 vcc, -1, 0")
                    a(f"v_cndmask_b32 v{T}, v{R.VL}, v{R.VLB}, vcc"); v = T
                elif k == 6:
                    a(f"s_cmp_eq_u32 {sw}, 1")
                    a(f"s_cselect_b32 s{T0+1}, {hex(OOB)}, 0")
                    a(f"v_or_b32 v{T+1}, s{T0+1}, v{R.VL}"); v = T+1
                else: v = R.VL
                a(f"s_add_u32 m0, s{T0+2}, {lb + k*2048}")
                a(f"s_add_u32 s{T0}, s{sb}, {k*2048}")
                a(f"buffer_load_dwordx4 v{v}, s[{SRD_WS}:{SRD_WS+3}], s{T0} offen sc1 lds"); Sd.issue("stg")
    def regs(s):
        b = R.U + 44*s
        return dict(Q=b, K0=b+4, K1=b+8, V0=b+12, V1=b+16, S=b+20, P=b+28, O0=b+32, O1=b+36, SM=b+40)
    def stA(g, h0):
        def f():
            for s in range(2):
                u = regs(s); h = h0 + s
                a(f"ds_read2_b64 v[{u['Q']}:{u['Q']+3}], v{R.AQ+g} offset0:{5*h} offset1:{5*h+1}")
                a(f"ds_read2_b64 v[{u['K0']}:{u['K0']+3}], v{R.AK+g} offset0:{5*h} offset1:{5*h+1}")
                a(f"ds_read2_b64 v[{u['K1']}:{u['K1']+3}], v{R.AK+g+1} offset0:{5*h} offset1:{5*h+1}")
            for s in range(2):
                u = regs(s); h = h0 + s
                for db in range(2):
                    d = u['V0'] + 4*db; o = g*2560 + 40*h + 32*db
                    a(f"ds_read_b64_tr_b16 v[{d}:{d+1}], v{R.AV} offset:{o}")
                    a(f"ds_read_b64_tr_b16 v[{d+2}:{d+3}], v{R.AV} offset:{o + 2560}")
            for s in range(2):
                u = regs(s)
                a(f"s_waitcnt lgkmcnt({8 + 3*(1-s)})")
                for r in range(2): a(f"v_and_b32 v{u['Q']+r}, v{R.MQ0}, v{u['Q']+r}")
                for r in range(2, 4): a(f"v_and_b32 v{u['Q']+r}, v{R.MQ1}, v{u['Q']+r}")
                a("s_nop 1")
                b0 = R.BI + 8 if g == 0 else R.BI
                a(f"v_mfma_f32_16x16x32_bf16 v[{u['S']}:{u['S']+3}], v[{u['K0']}:{u['K0']+3}], v[{u['Q']}:{u['Q']+3}], v[{b0}:{b0+3}]")
                a(f"v_mfma_f32_16x16x32_bf16 v[{u['S']+4}:{u['S']+7}], v[{u['K1']}:{u['K1']+3}], v[{u['Q']}:{u['Q']+3}], v[{R.BI+4}:{R.BI+7}]")
        return f
    def stB():
        a("s_nop 7")
        M = T
        for s in range(2):
            S = regs(s)['S']; m = M + 4*s
            a(f"v_max3_f32 v{m}, v{S}, v{S+1}, v{S+2}")
            a(f"v_max3_f32 v{m+1}, v{S+3}, v{S+4}, v{S+5}")
            a(f"v_max3_f32 v{m}, v{S+6}, v{S+7}, v{m}")
            a(f"v_max_f32 v{m}, v{m}, v{m+1}")
        for op in ("v_permlane32_swap_b32", "v_permlane16_swap_b32"):
            for s in range(2): a(f"v_mov_b32 v{M+4*s+1}, v{M+4*s}")
            a("s_nop 1")
            for s in range(2): a(f"{op} v{M+4*s}, v{M+4*s+1}")
            a("s_nop 0")
            for s in range(2): a(f"v_max_f32 v{M+4*s}, v{M+4*s}, v{M+4*s+1}")
        for s in range(2): a(f"v_mul_f32 v{M+4*s}, v{M+4*s}, v{R.CS}")
        for s in range(2):
            S = regs(s)['S']
            for r in range(8): a(f"v_fma_f32 v{S+r}, v{S+r}, v{R.CS}, -v{M+4*s}")
    def stC():
        for s in range(2):
            u = regs(s); S = u['S']
            for r in range(8): a(f"v_exp_f32 v{S+r}, v{S+r}")
        for s in range(2):
            u = regs(s); S = u['S']
            for p in range(4): a(f"v_cvt_pk_bf16_f32 v{u['P']+p}, v{S+2*p}, v{S+2*p+1}")
        a("s_waitcnt lgkmcnt(0)")
        a("s_nop 1")
        for s in range(2):
            u = regs(s); P = u['P']
            a(f"v_mfma_f32_16x16x32_bf16 v[{u['SM']}:{u['SM']+3}], v[{R.ONE}:{R.ONE+3}], v[{P}:{P+3}], 0")
            a(f"v_mfma_f32_16x16x32_bf16 v[{u['O0']}:{u['O0']+3}], v[{u['V0']}:{u['V0']+3}], v[{P}:{P+3}], 0")
            a(f"v_mfma_f32_16x16x32_bf16 v[{u['O1']}:{u['O1']+3}], v[{u['V1']}:{u['V1']+3}], v[{P}:{P+3}], 0")
    def stD(g, h0):
        def f():
            a("s_nop 7")
            for s in range(2):
                u = regs(s); a(f"v_rcp_f32 v{u['SM']}, v{u['SM']}")
            a("s_nop 0")
            for s in range(2):
                u = regs(s)
                for r in range(4): a(f"v_mul_f32 v{u['O0']+r}, v{u['O0']+r}, v{u['SM']}")
                for r in range(4): a(f"v_mul_f32 v{u['O1']+r}, v{u['O1']+r}, v{u['SM']}")
                a(f"v_cvt_pk_bf16_f32 v{u['P']}, v{u['O0']}, v{u['O0']+1}")
                a(f"v_cvt_pk_bf16_f32 v{u['P']+1}, v{u['O0']+2}, v{u['O0']+3}")
                a(f"v_cvt_pk_bf16_f32 v{u['P']+2}, v{u['O1']}, v{u['O1']+1}")
                a(f"v_cvt_pk_bf16_f32 v{u['P']+3}, v{u['O1']+2}, v{u['O1']+3}")
                h = h0 + s
                a(f"ds_write_b64 v{R.AO0+g}, v[{u['P']}:{u['P']+1}] offset:{40*h}")
                a(f"ds_write_b64 v{R.AO1+g}, v[{u['P']+2}:{u['P']+3}] offset:{40*h}")
        return f
    def o_store():
        a(f"s_mul_i32 s{T0}, {sw}, 5120")
        a(f"s_add_u32 s{T0}, s{T0}, {L_Q}")
        a(f"v_add_u32 v{T}, s{T0}, v{R.VL}")
        a("s_waitcnt lgkmcnt(0)")
        for i in range(5):
            a(f"ds_read_b128 v[{R.U+4*i}:{R.U+4*i+3}], v{T} offset:{i*1024}")
        for i in range(5):
            a(f"s_waitcnt lgkmcnt({4-i})")
            a(f"buffer_store_dwordx4 v[{R.U+4*i}:{R.U+4*i+3}], v{R.OA+i}, s[{SRD_WS}:{SRD_WS+3}], 0 offen sc1"); Sd.issue("o")
    def fo_addr():
        a(f"s_lshl_b32 s{T0}, s{S_TB}, 7")
        a(f"s_lshl_b32 s{T0+1}, s{S_FB}, 2")
        a(f"s_add_u32 s{T0}, s{T0}, s{T0+1}")
        a(f"s_add_u32 s{T0}, s{T0}, {F_O}")
    Sd.at_post(f"c.t{t_fp+1}", Sd.flag_store(fp_addr, "fp"))
    Sd.at_post("c.t0", setup)
    Sd.at_post("c.t1", fw_issue)
    Sd.at_post(f"c.t{t_poll-1}", fw_check)
    Sd.at_post(f"c.t{t_poll-1}", Sd.flag_store(ref_addr, "ref"))
    Sd.at_post(f"c.t{t_poll}", poll_fp)
    Sd.at_post(f"c.t{t_poll+1}", stage)
    Sd.at_pre(f"c.t{t_att}", lambda: Sd.wait("stg"))
    t = t_att
    for g in range(2):
        for h0 in (0, 2):
            Sd.at_post(f"c.t{t}", stA(g, h0))
            Sd.at_post(f"c.t{t+1}", stB)
            Sd.at_post(f"c.t{t+2}", stC)
            Sd.at_post(f"c.t{t+3}", stD(g, h0))
            t += 4
    Sd.at_post(f"c.t{t}", o_store)
    Sd.at_pre(f"c.t{t+3}", lambda: Sd.wait("o"))
    Sd.at_post(f"c.t{t+3}", Sd.flag_store(fo_addr, "fo"))
    return t + 3
```

```python
from fw2 import *
from k2 import flag_poll, P2_NS

P3_R, P3_SLOT, P3_WB, P3_NS = 6, 18432, 8192, 24
P3_OFF = 3

class D3:
    VXO, VXH, VL, VF, VT = 40, 41, 42, 43, 44
    S_MX, S_MW, S_WO = S_A+12, S_A+13, S_A+14

def p3_dma(D):
    a = D.a; w = f"s{S_LW}"; R = D3; T = 80
    def setup():
        a(f"v_lshrrev_b32 v{T}, 3, v{VLANE}")
        a(f"v_lshrrev_b32 v{T+1}, 4, v{VLANE}")
        a(f"s_lshl_b32 s{T0}, {w}, 2")
        a(f"v_add_u32 v{T+1}, s{T0}, v{T+1}")
        a(f"v_and_b32 v{T+2}, 7, v{VLANE}")
        a(f"v_xor_b32 v{T+1}, v{T+1}, v{T+2}")
        a(f"s_lshl_b32 s{T0}, s{S_TB}, 6")
        a(f"s_lshl_b32 s{T0+1}, {w}, 3")
        a(f"s_add_u32 s{T0}, s{T0}, s{T0+1}")
        a(f"v_add_u32 v{T}, s{T0}, v{T}")
        a(f"v_mul_u32_u24 v{T+2}, 1280, v{T}")
        a(f"v_lshl_add_u32 v{R.VXO}, v{T+1}, 4, v{T+2}")
        a(f"v_add_u32 v{R.VXO}, {WS_O}, v{R.VXO}")
        a(f"v_mul_u32_u24 v{T+2}, {H_PITCH}, v{T}")
        a(f"v_lshl_add_u32 v{R.VXH}, v{T+1}, 4, v{T+2}")
        a(f"v_add_u32 v{R.VXH}, {WS_H}, v{R.VXH}")
        a(f"v_lshlrev_b32 v{R.VL}, 4, v{VLANE}")
        a(f"s_lshl_b32 s{R.S_MX}, {w}, 10")
        a(f"s_mul_i32 s{R.S_MW}, {w}, 5120")
        a(f"s_mul_i32 s{R.S_WO}, s{S_FB}, {WB_CB}")
        a(f"s_add_u32 s{R.S_WO}, s{R.S_WO}, {WS_WB}")
        a(f"s_add_u32 s{R.S_WO}, s{R.S_WO}, s{R.S_MW}")
        a(f"s_lshl_b32 s{T0}, s{S_TB}, 7")
        a(f"s_add_u32 s{T0}, s{T0}, {F_O}")
        a(f"v_and_b32 v{T}, 7, v{VLANE}")
        a(f"v_lshl_add_u32 v{R.VF}, v{T}, 2, s{T0}")
    def slot(t): return ((t + P3_OFF) % P3_R)*P3_SLOT
    def xi(t, tag):
        base = slot(t)
        for k in range(4):
            a(f"s_add_u32 m0, s{R.S_MX}, {base + k*2048}")
            if t < 10:
                a(f"s_mov_b32 s{T0}, {t*128 + k*16*1280}")
                a(f"buffer_load_dwordx4 v{R.VXO}, s[{SRD_WS}:{SRD_WS+3}], s{T0} offen sc1 lds")
            else:
                a(f"s_mov_b32 s{T0}, {(t-10)*128 + k*16*H_PITCH}")
                a(f"buffer_load_dwordx4 v{R.VXH}, s[{SRD_WS}:{SRD_WS+3}], s{T0} offen sc1 lds")
            D.issue(tag)
    def wi(t, tag):
        base = slot(t) + P3_WB
        for k in range(5):
            a(f"s_add_u32 m0, s{R.S_MW}, {base + k*1024}")
            a(f"s_add_u32 s{T0}, s{R.S_WO}, {t*10240 + k*1024}")
            a(f"buffer_load_dwordx4 v{R.VL}, s[{SRD_WS}:{SRD_WS+3}], s{T0} offen sc1 lds"); D.issue(tag)
    def mk(kind, t):
        def f():
            if kind == "W":
                if t == 0: setup()
                wi(t, ("dW", t))
            elif kind == "X":
                if t == 0: flag_poll(a, D, R.VF, R.VT, SRD_WS, "Lfo")
                xi(t, ("dX", t))
            else:
                xi(t, ("d", t)); wi(t, ("d", t))
        return f
    NP = 3
    for t in range(NP):
        lo = slot(t) + P3_WB
        D.slices.append(Slice(("dW", t), lo, lo + P3_SLOT - P3_WB, mk("W", t)))
    for t in range(NP):
        lo = slot(t)
        D.slices.append(Slice(("dX", t), lo, lo + P3_WB, mk("X", t), minbar=("c.E" if t == 0 else None)))
    for t in range(NP, P3_NS):
        lo = slot(t)
        D.slices.append(Slice(("d", t), lo, lo + P3_SLOT, mk("XW", t)))
    def tags(t): return [("dW", t), ("dX", t)] if t < NP else [("d", t)]
    for t in range(P3_NS):
        D.bars.append((f"d.t{t}", tags(t)[-1], tags(t-1) if t else []))

class C3:
    ACC1, ACC2, XF, WF = 0, 20, 40, 48
    AX, AW = 88, 92
    XP = 96
    VO = 108
    T = 124

def p3_consumer(a, cons, prof=None, xt=16, htick=2):
    prof = prof or (lambda i: None)
    C = C3; XF, WF, AX, AW, T = C.XF, C.WF, C.AX, C.AW, C.T
    tmp = T0
    VT15, VQ = 246, 247
    a(f"v_lshrrev_b32 v{T+2}, 1, v{VT15}")
    a(f"v_xor_b32 v{T+2}, v{T+2}, v{VQ}")
    a(f"s_lshl_b32 s{tmp}, s{S_WAVE}, 4")
    a(f"v_add_u32 v{T+3}, s{tmp}, v{VT15}")
    a(f"v_lshlrev_b32 v{T+3}, 7, v{T+3}")
    a(f"v_lshl_add_u32 v{AX}, v{T+2}, 4, v{T+3}")
    a(f"v_xor_b32 v{AX+1}, 64, v{AX}")
    a(f"v_lshrrev_b32 v{T+3}, 1, v{VQ}")
    a(f"v_lshlrev_b32 v{T+3}, 4, v{T+3}")
    a(f"v_and_b32 v{T+4}, 1, v{VQ}")
    a(f"v_lshl_add_u32 v{T+3}, v{T+4}, 2, v{T+3}")
    a(f"v_lshrrev_b32 v{T+4}, 2, v{VT15}")
    a(f"v_add_u32 v{T+3}, v{T+3}, v{T+4}")
    a(f"v_mul_u32_u24 v{T+3}, 160, v{T+3}")
    a(f"v_and_b32 v{T+4}, 3, v{VT15}")
    a(f"v_lshl_add_u32 v{T+3}, v{T+4}, 3, v{T+3}")
    a(f"v_add_u32 v{AW}, {P3_WB}, v{T+3}")
    a(f"v_add_u32 v{AX+2}, {3*P3_SLOT}, v{AX}")
    a(f"v_add_u32 v{AX+3}, {3*P3_SLOT}, v{AX+1}")
    a(f"v_add_u32 v{AW+1}, {3*P3_SLOT}, v{AW}")
    def reads(j, step, st):
        slot = (j + P3_OFF) % P3_R; aset = slot // 3; so = (slot % 3)*P3_SLOT
        X = f"ds_read_b128 v[{XF+st*4}:{XF+st*4+3}], v{AX+2*aset+step} offset:{so}"
        Wr = []
        for b in range(5):
            d = WF + st*20 + b*4; o = so + step*5120 + b*32
            Wr += [f"ds_read_b64_tr_b16 v[{d}:{d+1}], v{AW+aset} offset:{o}",
                   f"ds_read_b64_tr_b16 v[{d+2}:{d+3}], v{AW+aset} offset:{o+1280}"]
        return [X] + Wr
    def mfmas(t, step, st):
        first = (t in (0, 10) and step == 0)
        A = C.ACC1 if t < 10 else C.ACC2
        r = []
        for b in range(5):
            acc = A + 4*b
            c = "0" if first else f"v[{acc}:{acc+3}]"
            r.append(f"v_mfma_f32_16x16x32_bf16 v[{acc}:{acc+3}], v[{WF+st*20+b*4}:{WF+st*20+b*4+3}], v[{XF+st*4}:{XF+st*4+3}], {c}")
        return r
    def x_loads():
        a(f"s_lshl_b32 s{tmp}, s{S_TB}, 6")
        a(f"s_lshl_b32 s{tmp+1}, s{S_WAVE}, 4")
        a(f"s_add_u32 s{tmp}, s{tmp}, s{tmp+1}")
        a(f"v_add_u32 v{T+5}, s{tmp}, v{VT15}")
        a(f"v_mul_u32_u24 v{T+5}, 1280, v{T+5}")
        a(f"s_mul_i32 s{tmp}, s{S_FB}, 160")
        a(f"v_add_u32 v{T+5}, s{tmp}, v{T+5}")
        a(f"v_and_b32 v{T+6}, 1, v{VQ}")
        a(f"v_lshrrev_b32 v{T+7}, 1, v{VQ}")
        a(f"v_lshl_or_b32 v{T+6}, v{T+6}, 1, v{T+7}")
        a(f"v_lshl_add_u32 v{C.VO}, v{T+6}, 4, v{T+5}")
        a(f"v_lshl_add_u32 v{C.VO+1}, v{VQ}, 3, v{T+5}")
        mk_srd(a, SRD_M, P_X, 2048*1280)
        a(f"buffer_load_dwordx4 v[{C.XP}:{C.XP+3}], v{C.VO}, s[{SRD_M}:{SRD_M+3}], 0 offen"); cons.issue("xp")
        a(f"buffer_load_dwordx4 v[{C.XP+4}:{C.XP+7}], v{C.VO}, s[{SRD_M}:{SRD_M+3}], 0 offen offset:64"); cons.issue("xp")
        a(f"buffer_load_dwordx2 v[{C.XP+8}:{C.XP+9}], v{C.VO+1}, s[{SRD_M}:{SRD_M+3}], 0 offen offset:128"); cons.issue("xp")
    hooks = {("pre", xt): [x_loads], ("pre", htick): [lambda: cons.wait("h")]}
    prof(0)
    kloop(a, cons, "d", P3_NS, reads, mfmas, last_steps=1, hooks=hooks)
    prof(1)
    U, E = 128, 136
    cons.wait("xp")
    mk_srd(a, SRD_M, P_OUT, 2048*1280)
    a(f"v_mov_b32 v{T}, {f32hex(-LOG2E)}")
    a(f"v_mov_b32 v{T+1}, {f32hex(-LOG2E)}")
    a(f"v_mov_b32 v{T+2}, 1.0")
    a(f"v_mov_b32 v{T+3}, 1.0")
    a("s_nop 4")
    def unit(regsB, regsS, xp, n):
        for h in range(n):
            a(f"v_pk_mul_f32 v[{E+2*h}:{E+2*h+1}], v[{regsB[h]}:{regsB[h]+1}], v[{T}:{T+1}]")
        for r in range(2*n): a(f"v_exp_f32 v{E+r}, v{E+r}")
        for p in range(n):
            a(f"v_lshlrev_b32 v{U+2*p}, 16, v{xp+p}")
            a(f"v_and_b32 v{U+2*p+1}, 0xffff0000, v{xp+p}")
        for h in range(n):
            a(f"v_pk_add_f32 v[{E+2*h}:{E+2*h+1}], v[{E+2*h}:{E+2*h+1}], v[{T+2}:{T+3}]")
        for r in range(2*n): a(f"v_rcp_f32 v{E+r}, v{E+r}")
        for h in range(n):
            a(f"v_pk_mul_f32 v[{regsB[h]}:{regsB[h]+1}], v[{regsB[h]}:{regsB[h]+1}], v[{regsS[h]}:{regsS[h]+1}]")
        a("s_nop 0")
        for h in range(n):
            a(f"v_pk_fma_f32 v[{U+2*h}:{U+2*h+1}], v[{regsB[h]}:{regsB[h]+1}], v[{E+2*h}:{E+2*h+1}], v[{U+2*h}:{U+2*h+1}]")
        for p in range(n):
            a(f"v_cvt_pk_bf16_f32 v{xp+p}, v{U+2*p}, v{U+2*p+1}")
    for pr in range(2):
        s0 = C.ACC1 + 8*pr; b0 = C.ACC2 + 8*pr
        for r in range(4): a(f"v_permlane16_swap_b32 v{s0+r}, v{s0+4+r}")
        for r in range(4): a(f"v_permlane16_swap_b32 v{b0+r}, v{b0+4+r}")
        a("s_nop 1")
        unit([b0+2*h for h in range(4)], [s0+2*h for h in range(4)], C.XP + 4*pr, 4)
        a(f"buffer_store_dwordx4 v[{C.XP+4*pr}:{C.XP+4*pr+3}], v{C.VO}, s[{SRD_M}:{SRD_M+3}], 0 offen offset:{64*pr}")
    unit([C.ACC2+16, C.ACC2+18], [C.ACC1+16, C.ACC1+18], C.XP + 8, 2)
    a(f"buffer_store_dwordx2 v[{C.XP+8}:{C.XP+9}], v{C.VO+1}, s[{SRD_M}:{SRD_M+3}], 0 offen offset:128")
    prof(2)

class S3:
    VF, VT, T = 152, 153, 140

def p3_side(Sd, t_fh=2, t_poll=3, t_chk=5):
    a = Sd.a; R = S3; T = R.T
    def fh_addr():
        a(f"s_lshl_b32 s{T0}, s{S_TB}, 7")
        a(f"s_lshl_b32 s{T0+1}, s{S_FB}, 2")
        a(f"s_add_u32 s{T0}, s{T0}, s{T0+1}")
        a(f"s_add_u32 s{T0}, s{T0}, {F_H}")
    def ld(): a(f"buffer_load_dword v{R.VT}, v{R.VF}, s[{SRD_WS}:{SRD_WS+3}], 0 offen sc1")
    def issue():
        a(f"s_lshl_b32 s{T0}, s{S_TB}, 7")
        a(f"s_add_u32 s{T0}, s{T0}, {F_H}")
        a(f"v_and_b32 v{T}, 7, v{VLANE}")
        a(f"v_lshl_add_u32 v{R.VF}, v{T}, 2, s{T0}")
        ld(); Sd.issue("fhp")
    def check():
        Sd.wait("fhp")
        poll_loop(a, ld, lambda: a(f"v_cmp_ne_u32 vcc, s{S_NONCE}, v{R.VT}"), "Lfh")
    Sd.at_post(f"d.t{t_fh}", Sd.flag_store(fh_addr, "fh"))
    Sd.at_post(f"d.t{t_poll}", issue)
    Sd.at_pre(f"d.t{t_chk}", check)
```

```python
import sys
from fw2 import *
from k1 import *
from k2 import *
from k3 import *

def prologue(a, name):
    a(f".globl {name}\n.p2align 8\n.type {name},@function\n{name}:")
    a("s_cmp_ge_u32 s2, 256")
    a("s_cbranch_scc1 L_end")
    load_ptrs(a)
    a("v_lshrrev_b32 v1, 6, v0")
    a(f"v_and_b32 v{VLANE}, 63, v0")
    if PROFBAR: a(f"s_memtime s[{S_T00}:{S_T00+1}]")
    a("v_readfirstlane_b32 s3, v1")
    a("s_waitcnt lgkmcnt(0)")
    mk_srd(a, SRD_WS, P_WS, WS_BYTES)
    a(f"s_add_u32 s{T0}, s{P_WS}, {F_REF}")
    a(f"s_addc_u32 s{T0+1}, s{P_WS+1}, 0")
    a(f"s_load_dword s{S_NONCE}, s[{T0}:{T0+1}], 0")

HEADER = None
def gen(name=KNAME, upto=3, header=""):
    a = Asm()
    if header: a(header.rstrip("\n"))
    a(f"; @launch grid=(256,1,1) block=(512,1,1) lds={LDS_BYTES}")
    a('.amdgcn_target "amdgcn-amd-amdhsa--gfx950"')
    a(".text")
    prologue(a, name)
    ids(a)
    a("s_cmp_ge_u32 s3, 6")
    a("s_cbranch_scc1 L_side")
    a("s_cmp_ge_u32 s3, 4")
    a("s_cbranch_scc1 L_dma")
    cons = Role(a)
    p1_consumer(a, cons, psc="sc1")
    if upto >= 2: p2_consumer(a, cons)
    if upto >= 3: p3_consumer(a, cons)
    if PROFBAR:
        a("s_waitcnt vmcnt(0)")
        cons.stamp(NSTAMP-2); prof_dump_v(a)
    a("s_endpgm")
    a(".p2align 6")
    a("L_dma:")
    D = DMA(a)
    p1_dma(D)
    D.pre_first.append(lambda: nonce_fin(a))
    if upto >= 2: p2_dma(D)
    if upto >= 3: p3_dma(D)
    D.emit()
    if PROFBAR:
        a("s_waitcnt vmcnt(0)")
        D.stamp(NSTAMP-2); prof_dump_v(a)
    a("s_endpgm")
    a(".p2align 6")
    a("L_side:")
    Sd = Side(a)
    p1_side(Sd)
    if upto >= 2: p2_side(Sd)
    if upto >= 3: p3_side(Sd)
    Sd.emit(cons.names)
    if PROFBAR:
        a("s_waitcnt vmcnt(0)")
        Sd.stamp(NSTAMP-2); prof_dump_v(a)
    assert D.names == cons.names == Sd.names, (D.names, cons.names, Sd.names)
    a("L_end:")
    a("s_endpgm")
    a('.section .rodata,"a"')
    a(kernel_desc(name))
    import hz
    return hz.fix(a.text()), cons.names

if __name__ == "__main__":
    upto = int(sys.argv[1]) if len(sys.argv) > 1 else 3
    out = sys.argv[2] if len(sys.argv) > 2 else "k.s"
    ref = open("recurrent_scan__sliding_local_dilated__mixer_gmlp__prompt.s.ref").read().split("\n")
    hdr = []
    for l in ref:
        if l.startswith("; @launch"): break
        hdr.append(l)
    asm, names = gen(upto=upto, header="\n".join(hdr))
    open(out, "w").write(asm)
    print(len(asm), "bytes", len(names), "barriers")
```

```python
import sys
from fw2 import *
from k1 import *
from k2 import *
from k3 import *

def prologue(a, name):
    a(f".globl {name}\n.p2align 8\n.type {name},@function\n{name}:")
    a("s_cmp_ge_u32 s2, 256")
    a("s_cbranch_scc1 L_end")
    load_ptrs(a)
    a("v_lshrrev_b32 v1, 6, v0")
    a(f"v_and_b32 v{VLANE}, 63, v0")
    if PROFBAR or DBGT: a(f"s_memtime s[{S_T00}:{S_T00+1}]")
    if DBGT: a("s_memrealtime s[90:91]")
    a("v_readfirstlane_b32 s3, v1")
    a("s_waitcnt lgkmcnt(0)")
    mk_srd(a, SRD_WS, P_WS, WS_BYTES)
    a(f"s_add_u32 s{T0}, s{P_WS}, {F_REF}")
    a(f"s_addc_u32 s{T0+1}, s{P_WS+1}, 0")
    a(f"s_load_dword s{S_NONCE}, s[{T0}:{T0+1}], 0")

import os
DBGT = os.environ.get("DBGT", "") == "1"
def dbg_dump(a):
    a("s_waitcnt vmcnt(0)")
    a("s_memtime s[92:93]")
    a("s_memrealtime s[94:95]")
    a("s_waitcnt lgkmcnt(0)")
    mk_srd(a, SRD_M, P_DBG, 256)
    a("s_sub_u32 s92, s92, s58")
    a("s_sub_u32 s96, s94, s90")
    a("s_not_b32 s90, s90")
    a("v_mov_b32 v2, 0")
    a("v_mov_b32 v3, s94")
    a("v_mov_b32 v4, s90")
    a("v_mov_b32 v5, s92")
    a("v_mov_b32 v6, s96")
    a(f"v_cmp_eq_u32 vcc, 0, v{VLANE}")
    a("s_and_saveexec_b64 s[22:23], vcc")
    a(f"buffer_atomic_umax v3, v2, s[{SRD_M}:{SRD_M+3}], 0 offen")
    a(f"buffer_atomic_umax v4, v2, s[{SRD_M}:{SRD_M+3}], 0 offen offset:4")
    a(f"buffer_atomic_umax v5, v2, s[{SRD_M}:{SRD_M+3}], 0 offen offset:8")
    a(f"buffer_atomic_umax v6, v2, s[{SRD_M}:{SRD_M+3}], 0 offen offset:12")
    a("s_mov_b64 exec, s[22:23]")
    a("s_waitcnt vmcnt(0)")
def gen(name=KNAME, upto=3, header=""):
    a = Asm()
    if header: a(header.rstrip("\n"))
    a(f"; @launch grid=(256,1,1) block=(512,1,1) lds={LDS_BYTES}")
    a('.amdgcn_target "amdgcn-amd-amdhsa--gfx950"')
    a(".text")
    prologue(a, name)
    ids(a)
    a("s_cmp_ge_u32 s3, 6")
    a("s_cbranch_scc1 L_side")
    a("s_cmp_ge_u32 s3, 4")
    a("s_cbranch_scc1 L_dma")
    cons = Role(a)
    p1_consumer(a, cons, psc="sc1")
    if upto >= 2: p2_consumer(a, cons)
    if upto >= 3: p3_consumer(a, cons)
    if DBGT: dbg_dump(a)
    if PROFBAR:
        a("s_waitcnt vmcnt(0)")
        cons.stamp(NSTAMP-2); prof_dump_v(a)
    a("s_endpgm")
    a(".p2align 6")
    a("L_dma:")
    D = DMA(a)
    p1_dma(D)
    D.pre_first.append(lambda: nonce_fin(a))
    if upto >= 2: p2_dma(D)
    if upto >= 3: p3_dma(D)
    D.emit()
    if PROFBAR:
        a("s_waitcnt vmcnt(0)")
        D.stamp(NSTAMP-2); prof_dump_v(a)
    a("s_endpgm")
    a(".p2align 6")
    a("L_side:")
    Sd = Side(a)
    p1_side(Sd)
    if upto >= 2: p2_side(Sd)
    if upto >= 3: p3_side(Sd)
    Sd.emit(cons.names)
    if PROFBAR:
        a("s_waitcnt vmcnt(0)")
        Sd.stamp(NSTAMP-2); prof_dump_v(a)
    assert D.names == cons.names == Sd.names, (D.names, cons.names, Sd.names)
    a("L_end:")
    a("s_endpgm")
    a('.section .rodata,"a"')
    a(kernel_desc(name))
    import hz
    return hz.fix(a.text()), cons.names

if __name__ == "__main__":
    upto = int(sys.argv[1]) if len(sys.argv) > 1 else 3
    out = sys.argv[2] if len(sys.argv) > 2 else "k.s"
    ref = open("recurrent_scan__sliding_local_dilated__mixer_gmlp__prompt.s.ref").read().split("\n")
    hdr = []
    for l in ref:
        if l.startswith("; @launch"): break
        hdr.append(l)
    asm, names = gen(upto=upto, header="\n".join(hdr))
    open(out, "w").write(asm)
    print(len(asm), "bytes", len(names), "barriers")
```

```python
from asmgen import *
import struct

KNAME = "recurrent_scan__sliding_local_dilated__mixer_gmlp__prompt_kernel"
VLANE = 250

S_WG, S_WAVE = 2, 3
SRD_X, SRD_WS, SRD_W, SRD_M = 4, 8, 12, 16
T0 = 20
S_M, S_J, S_NONCE, S_LW = 32, 33, 34, 35
S_TB, S_FB = 36, 37
S_XOFF, S_WOFF = 38, 39
S_M0X = 40
S_M0W = 44
S_MSK = 48
S_P3T, S_P3C = 56, 57
SRD_Z = 60
PTR = 64
P_X, P_WQKV, P_WO, P_BX, P_WIN, P_WSP, P_BSP, P_WOUT, P_OUT, P_DBG, P_WS = [64+2*i for i in range(11)]
S_PROF = 86

RING = 122880
L_RS = RING
L_CS = RING + 1024
L_ST = RING + 2048
L_ZT = RING + 3072
L_GB = RING + 4096
LDS_BYTES = 163840

F_REF  = WS_FLAG
F_ALIVE= WS_FLAG + 0x1000
F_ST   = WS_FLAG + 0x2000
F_Z    = WS_FLAG + 0x3000
F_P    = WS_FLAG + 0x4000
F_H    = WS_FLAG + 0x5000
F_O    = WS_FLAG + 0x6000
OOB = 0x40000000

def f32hex(x):
    return hex(struct.unpack("<I", struct.pack("<f", x))[0])

GELU_K0 = -2.0*0.7978845608028654*1.4426950408889634
GELU_K1 = GELU_K0*0.044715

def load_ptrs(a):
    a(f"s_load_dwordx16 s[64:79], s[0:1], 0")
    a(f"s_load_dwordx4 s[80:83], s[0:1], 64")
    a(f"s_load_dwordx2 s[84:85], s[0:1], 80")

def mk_srd(a, dst, ptr, nbytes):
    a(f"s_mov_b32 s{dst}, s{ptr}")
    a(f"s_mov_b32 s{dst+1}, s{ptr+1}")
    a(f"s_mov_b32 s{dst+2}, {hex(nbytes) if isinstance(nbytes,int) else nbytes}")
    a(f"s_mov_b32 s{dst+3}, 0x20000")

class Bar:
    def __init__(self, name, need=None, frees=(), pre=(), post0=(), post=()):
        self.name, self.need, self.frees = name, need, list(frees)
        self.pre, self.post0, self.post = list(pre), list(post0), list(post)

class Slice:
    def __init__(self, tag, lo, hi, issue, minbar=None):
        self.tag, self.lo, self.hi, self.issue, self.minbar = tag, lo, hi, issue, minbar

class Loader:
    def __init__(self, a):
        self.a = a
        self.vm = VM()
        self.slices = []
        self.bars = []
        self.names = []
    def wait(self, tags):
        n = self.vm.need(set(tags))
        assert n is not None, tags
        self.a(f"s_waitcnt vmcnt({min(n,63)})")
    def emit(self):
        a = self.a
        live = []
        nxt = 0
        done_bars = set()
        def try_issue():
            nonlocal nxt
            while nxt < len(self.slices):
                s = self.slices[nxt]
                if s.minbar is not None and s.minbar not in done_bars: break
                if any(not (s.hi <= o.lo or o.hi <= s.lo) for o in live): break
                s.issue(); live.append(s); nxt += 1
        try_issue()
        for b in self.bars:
            for f in b.pre: f()
            if b.need is not None:
                assert any(t == b.need for t in self.vm.ops), f"slice {b.need} not issued before barrier {b.name}"
                self.wait([b.need])
            a(f"s_barrier   ; {b.name}")
            self.names.append(b.name); done_bars.add(b.name)
            for t in b.frees:
                live[:] = [o for o in live if o.tag != t]
            for f in b.post0: f()
            try_issue()
            for f in b.post: f()
        assert nxt == len(self.slices), "unissued slices"

class Cons:
    def __init__(self, a):
        self.a = a; self.names = []
    def bar(self, name):
        self.a(f"s_barrier   ; {name}"); self.names.append(name)

def interleave(m, r, per=None):
    out = []; ri = 0
    n2 = max(0, len(r) - len(m) + 2)
    for i, x in enumerate(m):
        out.append(x)
        k = per if per else (2 if i < max(n2, len(r)//3) else 1)
        for _ in range(k):
            if ri < len(r):
                out.append(r[ri]); ri += 1
    out += r[ri:]
    return out

def kloop(a, cons, name, nslices, reads, mfmas, last_steps=2, tickname=None, hooks=None, first_reads_done=False, next_first=None):
    hooks = hooks or {}
    tickname = tickname or (lambda t: f"{name}.t{t}")
    cons.bar(tickname(0))
    if ("post", 0) in hooks: hooks[("post", 0)]()
    for x in reads(0, 0, 0): a(x)
    for t in range(nslices):
        last = t == nslices - 1
        a("s_waitcnt lgkmcnt(0)")
        if last and last_steps == 1:
            for x in mfmas(0, t == 0): a(x)
            break
        for x in interleave(mfmas(0, t == 0), reads(t, 1, 1)): a(x)
        a("s_waitcnt lgkmcnt(0)")
        if not last:
            if ("pre", t+1) in hooks: hooks[("pre", t+1)]()
            cons.bar(tickname(t+1))
            if ("post", t+1) in hooks: hooks[("post", t+1)]()
            for x in interleave(mfmas(1, False), reads(t+1, 0, 0)): a(x)
        else:
            for x in mfmas(1, False): a(x)
```

```python
from fw import *
import os
VAR = os.environ.get('P1VAR', '')

XPART = 16384
SLOT, NR = 32768, 4
S_WA0, S_WA1 = 48, 49
S_WBB  = 50
S_M0   = 51
S_ZOK  = 52
T_POLL = 4
P1AUX = NR*SLOT
L_RS = P1AUX
L_CS = P1AUX + 1024
L_ST = P1AUX + 2048
L_ZT = P1AUX + 4096
L_GB = P1AUX + 5120

def p1_ids(a):
    a(f"s_and_b32 s{T0}, s{S_WG}, 7")
    a(f"s_lshr_b32 s{T0+1}, s{S_WG}, 3")
    a(f"s_and_b32 s{S_M}, s{T0}, 1")
    a(f"s_lshl_b32 s{S_M}, s{S_M}, 3")
    a(f"s_lshr_b32 s{T0+2}, s{T0+1}, 2")
    a(f"s_add_u32 s{S_M}, s{S_M}, s{T0+2}")
    a(f"s_lshr_b32 s{S_J}, s{T0}, 1")
    a(f"s_lshl_b32 s{S_J}, s{S_J}, 2")
    a(f"s_and_b32 s{T0+2}, s{T0+1}, 3")
    a(f"s_add_u32 s{S_J}, s{S_J}, s{T0+2}")
    if 'same' in VAR:
        a(f"s_and_b32 s{S_M}, s{S_WG}, 7")
        a(f"s_and_b32 s{S_J}, s{S_WG}, 7")
    if 'samem' in VAR:
        pass
    a(f"s_and_b32 s{S_LW}, s{S_WAVE}, 3")
    a(f"s_cmp_lt_u32 s{S_J}, 14")
    a(f"s_cselect_b32 s{S_ZOK}, 1, 0")
    a(f"s_cselect_b32 s{T0}, {hex(WS_BYTES)}, 0")
    mk_srd(a, SRD_Z, P_WS, f"s{T0}")

class P1L:
    VX, VWA, VWB = 10, 14, 16
    VRS, VCS, VA0, VA1 = 20, 21, 22, 23
    SUM, SQ = 24, 28
    CA, CB = 32, 34
    ONES = 36
    D = 40
    VZA, VFL = 73, 74
    VT = 80
    PAY = 100

def p1_loader_setup(a):
    L = P1L; T = L.VT; w = f"s{S_LW}"
    a(f"s_lshl_b32 s{S_M0}, {w}, 10")
    a(f"v_lshrrev_b32 v{T}, 3, v{VLANE}")
    a(f"v_lshrrev_b32 v{T+1}, 4, v{VLANE}")
    a(f"s_and_b32 s{T0}, {w}, 1")
    a(f"s_lshl_b32 s{T0+1}, s{T0}, 2")
    a(f"v_add_u32 v{T+2}, s{T0+1}, v{T+1}")
    a(f"v_and_b32 v{T+3}, 7, v{VLANE}")
    a(f"v_xor_b32 v{T+2}, v{T+2}, v{T+3}")
    a(f"s_lshl_b32 s{T0+1}, s{S_M}, 7")
    a(f"s_lshl_b32 s{T0+2}, {w}, 3")
    a(f"s_add_u32 s{T0+1}, s{T0+1}, s{T0+2}")
    a(f"v_add_u32 v{T+4}, s{T0+1}, v{T}")
    a(f"v_mul_u32_u24 v{T+4}, 1280, v{T+4}")
    a(f"v_lshl_add_u32 v{L.VX}, v{T+2}, 4, v{T+4}")
    for k in range(1, 4):
        a(f"v_add_u32 v{L.VX+k}, {k*32*1280}, v{L.VX}")
    a(f"v_and_b32 v{T+2}, 1, v{T+1}")
    a(f"s_lshl_b32 s{T0+1}, s{T0}, 1")
    a(f"v_or_b32 v{T+2}, s{T0+1}, v{T+2}")
    a(f"v_lshlrev_b32 v{T+2}, 1, v{T+2}")
    a(f"v_xor_b32 v{T+2}, v{T+2}, v{T+3}")
    a(f"v_lshlrev_b32 v{T+2}, 4, v{T+2}")
    a(f"v_add_u32 v{T+4}, s{T0+2}, v{T}")
    a(f"v_mul_u32_u24 v{T+5}, 3456, v{T+4}")
    a(f"v_add_u32 v{L.VWA}, v{T+5}, v{T+2}")
    a(f"v_add_u32 v{L.VWA+1}, {32*3456}, v{L.VWA}")
    a(f"v_mul_u32_u24 v{T+5}, 3840, v{T+4}")
    a(f"v_add_u32 v{L.VWB}, v{T+5}, v{T+2}")
    a(f"v_add_u32 v{L.VWB+1}, {32*3840}, v{L.VWB}")
    a(f"s_add_u32 s{S_WA0}, s{S_J}, 13")
    a(f"s_min_u32 s{S_WA0}, s{S_WA0}, 26")
    a(f"s_lshl_b32 s{S_WA0}, s{S_WA0}, 7")
    a(f"s_min_u32 s{S_WA1}, s{S_J}, 12")
    a(f"s_lshl_b32 s{S_WA1}, s{S_WA1}, 7")
    a(f"s_lshl_b32 s{S_WBB}, s{S_J}, 8")
    a(f"s_lshl_b32 s{T0+1}, {w}, 12")
    a(f"v_lshlrev_b32 v{T+2}, 4, v{VLANE}")
    a(f"v_add_u32 v{L.VRS}, s{T0+1}, v{T+2}")
    a(f"v_bfe_u32 v{T+2}, v{VLANE}, 2, 2")
    a(f"v_lshl_add_u32 v{T+3}, v{T+1}, 3, v{T+2}")
    a(f"v_lshlrev_b32 v{T+3}, 7, v{T+3}")
    a(f"v_lshrrev_b32 v{T+2}, 1, v{T+2}")
    a(f"v_and_b32 v{T+4}, 1, v{T+1}")
    a(f"v_lshl_or_b32 v{T+2}, v{T+4}, 1, v{T+2}")
    a(f"v_xor_b32 v{T+2}, {w}, v{T+2}")
    a(f"v_lshlrev_b32 v{T+2}, 5, v{T+2}")
    a(f"v_add_u32 v{T+3}, v{T+3}, v{T+2}")
    a(f"v_and_b32 v{T+2}, 3, v{VLANE}")
    a(f"v_lshlrev_b32 v{T+2}, 3, v{T+2}")
    a(f"v_add_u32 v{T+3}, v{T+3}, v{T+2}")
    a(f"v_add_u32 v{L.VCS}, {XPART}, v{T+3}")
    a(f"v_mov_b32 v{L.ONES}, 0x3f803f80")
    for r in range(L.SUM, L.ONES): a(f"v_mov_b32 v{r}, 0")

def srd_p1a(a):
    mk_srd(a, SRD_X, P_X, 2048*1280)
    a(f"s_cmp_lt_u32 s{S_J}, 14")
    a(f"s_cselect_b32 s{T0}, {640*3456}, 0")
    mk_srd(a, SRD_W, P_WIN, f"s{T0}")

def srd_p1b(a):
    a(f"s_cmp_lt_u32 s{S_J}, 15")
    a(f"s_cselect_b32 s{T0}, {640*3840}, 0")
    mk_srd(a, SRD_W, P_WQKV, f"s{T0}")

def red_q(a, regs, tmps):
    for op in ("v_permlane32_swap_b32", "v_permlane16_swap_b32"):
        for r, t in zip(regs, tmps): a(f"v_mov_b32 v{t}, v{r}")
        a("s_nop 1")
        for r, t in zip(regs, tmps): a(f"{op} v{r}, v{t}")
        a("s_nop 0")
        for r, t in zip(regs, tmps): a(f"v_add_f32 v{r}, v{r}, v{t}")

def p1_loader(LD):
    a = LD.a; vm = LD.vm; L = P1L
    def issue(ph, t):
        def f():
            if ph == "b" and t == 0: srd_p1b(a)
            base = ((t + (10 if ph == "b" else 0)) % NR)*SLOT
            a(f"s_mov_b32 s{S_XOFF}, {t*128}")
            if ph == "a":
                a(f"s_add_u32 s{T0}, s{S_WA0}, {t*64*3456}")
                a(f"s_add_u32 s{T0+1}, s{S_WA1}, {t*64*3456}")
            else:
                a(f"s_add_u32 s{T0}, s{S_WBB}, {t*64*3840}")
            for k in range(4):
                a(f"s_add_u32 m0, s{S_M0}, {base + k*4096}")
                a("s_nop 0")
                a(f"buffer_load_dwordx4 v{L.VX+k}, s[{SRD_X}:{SRD_X+3}], s{S_XOFF} offen lds"); vm.issue((ph, t))
            for ln in range(2):
                for k in range(2):
                    if ph == "a":
                        a(f"s_add_u32 m0, s{S_M0}, {base + XPART + ln*8192 + k*4096}")
                        a("s_nop 0")
                        a(f"buffer_load_dwordx4 v{L.VWA+k}, s[{SRD_W}:{SRD_W+3}], s{T0+ln} offen lds"); vm.issue((ph, t))
                    else:
                        a(f"s_add_u32 m0, s{S_M0}, {base + XPART + ln*8192 + k*4096 - ln*128}")
                        a("s_nop 0")
                        a(f"buffer_load_dwordx4 v{L.VWB+k}, s[{SRD_W}:{SRD_W+3}], s{T0} offen offset:{ln*128} lds"); vm.issue((ph, t))
        return f
    def side_rd(ph, t):
        def f():
            if 'noside' in VAR: return
            base = ((t + (10 if ph == "b" else 0)) % NR)*SLOT
            D = L.D
            a(f"v_add_u32 v{L.VA1}, {base}, v{L.VCS}")
            if ph == "a":
                a(f"v_add_u32 v{L.VA0}, {base}, v{L.VRS}")
                for k in range(4):
                    a(f"ds_read_b128 v[{D+4*k}:{D+4*k+3}], v{L.VA0} offset:{k*1024}")
            for ln in range(2):
                for st in range(2):
                    for h in range(2):
                        d = D + 16 + ln*8 + st*4 + h*2
                        a(f"ds_read_b64_tr_b16 v[{d}:{d+1}], v{L.VA1} offset:{ln*8192 + st*4096 + h*512}")
        return f
    def side_dot(ph, t):
        def f():
            if 'noside' in VAR: return
            D = L.D
            a("s_waitcnt lgkmcnt(0)")
            if 'nodot' in VAR: return
            C = L.CA if ph == "a" else L.CB
            dots = []
            if ph == "a":
                for i in range(4):
                    for k in range(4):
                        dots.append(f"v_dot2c_f32_bf16 v{L.SUM+k}, v{D+4*k+i}, v{L.ONES}")
                        dots.append(f"v_dot2c_f32_bf16 v{L.SQ+k}, v{D+4*k+i}, v{D+4*k+i}")
            cd = []
            for i in range(8):
                for ln in range(2):
                    cd.append(f"v_dot2c_f32_bf16 v{C+ln}, v{D+16+ln*8+i}, v{L.ONES}")
            if dots:
                out = []
                for i, x in enumerate(dots):
                    out.append(x)
                    if i % 2 == 1 and cd: out.append(cd.pop(0))
                dots = out + cd
            else:
                dots = cd
            for x in dots: a(x)
        return f
    def cs_write(C, off):
        T = L.VT
        a(f"v_and_b32 v{T+6}, 15, v{VLANE}")
        a(f"s_lshl_b32 s{T0}, s{S_LW}, 4")
        a(f"v_add_u32 v{T+6}, s{T0}, v{T+6}")
        a(f"v_lshlrev_b32 v{T+6}, 2, v{T+6}")
        a(f"v_add_u32 v{T+6}, {L_CS+off}, v{T+6}")
        for ln in range(2):
            a(f"ds_write_b32 v{T+6}, v{C+ln} offset:{ln*256}")
    def fin_a():
        T = L.VT
        a("s_nop 2")
        for op in ("quad_perm:[1,0,3,2]", "quad_perm:[2,3,0,1]", "row_half_mirror"):
            for r in list(range(L.SUM, L.SUM+4)) + list(range(L.SQ, L.SQ+4)):
                a(f"v_add_f32_dpp v{r}, v{r}, v{r} {op} row_mask:0xf bank_mask:0xf")
        red_q(a, [L.CA, L.CA+1], [T, T+1])
        for k in range(4):
            a(f"v_mul_f32 v{L.SUM+k}, {f32hex(1/640)}, v{L.SUM+k}")
        for k in range(4):
            a(f"v_mul_f32 v{T+k}, v{L.SUM+k}, v{L.SUM+k}")
        a(f"v_mov_b32 v{T+4}, {f32hex(1/640)}")
        for k in range(4):
            a(f"v_fma_f32 v{L.SQ+k}, v{L.SQ+k}, v{T+4}, -v{T+k}")
        for k in range(4):
            a(f"v_max_f32 v{L.SQ+k}, 0, v{L.SQ+k}")
        for k in range(4):
            a(f"v_add_f32 v{L.SQ+k}, {f32hex(1e-5)}, v{L.SQ+k}")
        for k in range(4):
            a(f"v_rsq_f32 v{T+2*k+8}, v{L.SQ+k}")
        a("s_nop 0")
        for k in range(4):
            a(f"v_mul_f32 v{T+2*k+9}, v{L.SUM+k}, v{T+2*k+8}")
        for k in range(4):
            a(f"v_mul_f32 v{T+2*k+9}, -1.0, v{T+2*k+9}")
        a(f"v_lshrrev_b32 v{T+5}, 3, v{VLANE}")
        a(f"s_lshl_b32 s{T0}, s{S_LW}, 5")
        a(f"v_add_u32 v{T+5}, s{T0}, v{T+5}")
        a(f"v_lshlrev_b32 v{T+5}, 3, v{T+5}")
        a(f"v_add_u32 v{T+5}, {L_RS}, v{T+5}")
        for k in range(4):
            a(f"ds_write_b64 v{T+5}, v[{T+2*k+8}:{T+2*k+9}] offset:{k*64}")
        cs_write(L.CA, 0)
        a("s_waitcnt lgkmcnt(0)")
    def fin_b():
        T = L.VT
        a("s_nop 2")
        red_q(a, [L.CB, L.CB+1], [T, T+1])
        cs_write(L.CB, 512)
        a("s_waitcnt lgkmcnt(0)")
    def pub_stats():
        T = L.VT
        a(f"v_and_b32 v{T}, 31, v{VLANE}")
        a(f"s_lshl_b32 s{T0}, s{S_LW}, 5")
        a(f"v_add_u32 v{T}, s{T0}, v{T}")
        a(f"v_lshlrev_b32 v{T}, 3, v{T}")
        a(f"v_add_u32 v{T+1}, {L_ST}, v{T}")
        a(f"ds_read_b64 v[{T+2}:{T+3}], v{T+1}")
        a(f"ds_read_b64 v[{T+6}:{T+7}], v{T+1} offset:1024")
        a(f"s_mul_i32 s{T0}, s{S_M}, 14")
        a(f"s_add_u32 s{T0}, s{T0}, s{S_J}")
        a(f"s_lshl_b32 s{T0}, s{T0}, 10")
        a(f"s_add_u32 s{T0}, s{T0}, {WS_XS}")
        a(f"v_add_u32 v{T}, s{T0}, v{T}")
        a(f"v_mov_b32 v{T+4}, {hex(OOB)}")
        a(f"v_cmp_gt_u32 vcc, 32, v{VLANE}")
        a("s_waitcnt lgkmcnt(0)")
        a(f"v_add_f32 v{T+2}, v{T+2}, v{T+6}")
        a(f"v_add_f32 v{T+3}, v{T+3}, v{T+7}")
        a(f"v_cndmask_b32 v{T}, v{T+4}, v{T}, vcc")
        a(f"buffer_store_dwordx2 v[{T+2}:{T+3}], v{T}, s[{SRD_Z}:{SRD_Z+3}], 0 offen sc1"); vm.issue("xs")
    def flag_store(base, tag, srd=SRD_Z):
        def f():
            T = L.VT
            a(f"s_lshl_b32 s{T0}, s{S_M}, 7")
            a(f"s_lshl_b32 s{T0+1}, s{S_J}, 2")
            a(f"s_add_u32 s{T0}, s{T0}, s{T0+1}")
            a(f"s_add_u32 s{T0}, s{T0}, {base}")
            a(f"s_cmp_eq_u32 s{S_LW}, 0")
            a(f"s_cselect_b32 s{T0}, s{T0}, {hex(OOB)}")
            a(f"v_mov_b32 v{T}, {hex(OOB)}")
            a(f"v_mov_b32 v{T+1}, s{T0}")
            a(f"v_cmp_eq_u32 vcc, 0, v{VLANE}")
            a(f"v_mov_b32 v{T+2}, s{S_NONCE}")
            a("s_nop 0")
            a(f"v_cndmask_b32 v{T}, v{T}, v{T+1}, vcc")
            a(f"buffer_store_dword v{T+2}, v{T}, s[{srd}:{srd+3}], 0 offen sc1"); vm.issue(tag)
        return f
    def poll_issue():
        a(f"v_min_u32 v{L.VFL}, 13, v{VLANE}")
        a(f"v_lshlrev_b32 v{L.VFL}, 2, v{L.VFL}")
        a(f"s_lshl_b32 s{T0}, s{S_M}, 7")
        a(f"s_add_u32 s{T0}, s{T0}, {F_ST}")
        a(f"v_add_u32 v{L.VFL}, s{T0}, v{L.VFL}")
        a(f"buffer_load_dword v{L.VFL+1}, v{L.VFL}, s[{SRD_Z}:{SRD_Z+3}], 0 offen sc1"); vm.issue("poll1")
    def poll_check():
        T = L.VT
        lp, ok = a.lab("Lp1"), a.lab("Lp1ok")
        LD.wait(["poll1"])
        a(f"s_cmp_eq_u32 s{S_ZOK}, 0")
        a(f"s_cbranch_scc1 {ok}")
        a(f"s_mov_b32 s{T0}, 0")
        a(f"{lp}:")
        a(f"v_cmp_ne_u32 vcc, s{S_NONCE}, v{L.VFL+1}")
        a("s_nop 4")
        a(f"s_cmp_eq_u64 vcc, 0")
        a(f"s_cbranch_scc1 {ok}")
        a(f"s_add_u32 s{T0}, s{T0}, 1")
        a(f"s_cmp_gt_u32 s{T0}, 2000")
        a(f"s_cbranch_scc1 {ok}")
        a("s_sleep 1")
        a(f"buffer_load_dword v{L.VFL+1}, v{L.VFL}, s[{SRD_Z}:{SRD_Z+3}], 0 offen sc1")
        a("s_waitcnt vmcnt(0)")
        a(f"s_branch {lp}")
        a(f"{ok}:")
        a(f"v_and_b32 v{T}, 31, v{VLANE}")
        a(f"s_lshl_b32 s{T0}, s{S_LW}, 5")
        a(f"v_add_u32 v{T}, s{T0}, v{T}")
        a(f"v_lshlrev_b32 v{T}, 3, v{T}")
        a(f"v_lshrrev_b32 v{T+1}, 5, v{VLANE}")
        a(f"v_mul_u32_u24 v{T+1}, {7*1024}, v{T+1}")
        a(f"v_add_u32 v{T}, v{T}, v{T+1}")
        a(f"s_mul_i32 s{T0}, s{S_M}, {14*1024}")
        a(f"s_add_u32 s{T0}, s{T0}, {WS_XS}")
        a(f"v_add_u32 v{T}, s{T0}, v{T}")
        for i in range(7):
            if i == 4: a(f"v_add_u32 v{T}, 4096, v{T}")
            off = (i % 4)*1024
            a(f"buffer_load_dwordx2 v[{L.PAY+2*i}:{L.PAY+2*i+1}], v{T}, s[{SRD_Z}:{SRD_Z+3}], 0 offen offset:{off} sc1"); vm.issue("pay")
    def normalise():
        T = L.VT; D = L.D; PY = L.PAY
        LD.wait(["pay"])
        a(f"v_add_f32 v{D}, v{PY}, v{PY+2}")
        a(f"v_add_f32 v{D+1}, v{PY+1}, v{PY+3}")
        for i in range(2, 7):
            a(f"v_add_f32 v{D}, v{D}, v{PY+2*i}")
            a(f"v_add_f32 v{D+1}, v{D+1}, v{PY+2*i+1}")
        for r in (D, D+1):
            a(f"v_mov_b32 v{T}, v{r}")
            a("s_nop 1")
            a(f"v_permlane32_swap_b32 v{r}, v{T}")
            a("s_nop 0")
            a(f"v_add_f32 v{r}, v{r}, v{T}")
        a(f"v_mul_f32 v{D}, {f32hex(1/864)}, v{D}")
        a(f"v_mul_f32 v{T}, v{D}, v{D}")
        a(f"v_mov_b32 v{T+1}, {f32hex(1/864)}")
        a(f"v_fma_f32 v{D+1}, v{D+1}, v{T+1}, -v{T}")
        a(f"v_max_f32 v{D+1}, 0, v{D+1}")
        a(f"v_add_f32 v{D+1}, {f32hex(1e-5)}, v{D+1}")
        a(f"v_rsq_f32 v{T+2}, v{D+1}")
        a("s_nop 0")
        a(f"v_mul_f32 v{T+3}, v{D}, v{T+2}")
        a(f"v_mul_f32 v{T+3}, -1.0, v{T+3}")
        a(f"v_and_b32 v{T}, 31, v{VLANE}")
        a(f"s_lshl_b32 s{T0}, s{S_LW}, 5")
        a(f"v_add_u32 v{T}, s{T0}, v{T}")
        a(f"v_lshlrev_b32 v{T}, 3, v{T}")
        a(f"v_add_u32 v{T}, {L_ZT}, v{T}")
        a(f"ds_write_b64 v{T}, v[{T+2}:{T+3}]")
        a(f"v_lshrrev_b32 v{T}, 3, v{VLANE}")
        a(f"v_add_u32 v{T}, s{T0}, v{T}")
        a(f"v_lshlrev_b32 v{T+1}, 3, v{T}")
        a(f"v_add_u32 v{T+1}, {L_ZT}, v{T+1}")
        a(f"v_and_b32 v{T+2}, 7, v{VLANE}")
        a(f"v_lshrrev_b32 v{T+3}, 4, v{VLANE}")
        a(f"v_xor_b32 v{T+3}, v{T+3}, v{T+2}")
        a(f"v_lshlrev_b32 v{T+3}, 4, v{T+3}")
        a(f"v_lshl_add_u32 v{T+3}, v{T}, 7, v{T+3}")
        a(f"v_add_u32 v{T+3}, {L_GB}, v{T+3}")
        a(f"v_xor_b32 v{T+4}, 64, v{T+3}")
        a("s_waitcnt lgkmcnt(0)")
        for i in range(4):
            a(f"ds_read_b64 v[{D+16+2*i}:{D+17+2*i}], v{T+1} offset:{i*64}")
            a(f"ds_read_b128 v[{D+4*i}:{D+4*i+3}], v{T+3+(i&1)} offset:{i*1024}")
        a(f"s_lshl_b32 s{T0+1}, s{S_J}, 3")
        a(f"s_sub_u32 s{T0+1}, s{T0+1}, 4")
        a(f"v_add_u32 v{T+5}, s{T0+1}, v{T+2}")
        a(f"v_cmp_gt_i32 vcc, 0, v{T+5}")
        a(f"v_mul_u32_u24 v{T+6}, 4682, v{T+5}")
        a(f"v_lshrrev_b32 v{T+6}, 16, v{T+6}")
        a(f"v_mul_u32_u24 v{T+7}, 14, v{T+6}")
        a(f"v_sub_u32 v{T+7}, v{T+5}, v{T+7}")
        a(f"v_mul_u32_u24 v{T+6}, {2048*224}, v{T+6}")
        a(f"v_lshl_add_u32 v{T+6}, v{T+7}, 4, v{T+6}")
        a(f"s_lshl_b32 s{T0+1}, s{S_M}, 7")
        a(f"v_add_u32 v{T+7}, s{T0+1}, v{T}")
        a(f"v_mul_u32_u24 v{T+7}, 224, v{T+7}")
        a(f"v_add_u32 v{T+6}, v{T+6}, v{T+7}")
        a(f"v_add_u32 v{T+6}, {WS_Z2N}, v{T+6}")
        a(f"v_mov_b32 v{T+7}, {hex(OOB)}")
        a(f"v_cndmask_b32 v{L.VZA}, v{T+6}, v{T+7}, vcc")
        a("s_waitcnt lgkmcnt(0)")
        U = T + 8
        for i in range(4):
            g = D + 4*i; rho = D+16+2*i; nm = rho + 1
            for p in range(4):
                a(f"v_lshlrev_b32 v{U+2*p}, 16, v{g+p}")
                a(f"v_and_b32 v{U+2*p+1}, 0xffff0000, v{g+p}")
            for e in range(8):
                a(f"v_fma_f32 v{U+e}, v{U+e}, v{rho}, v{nm}")
            for p in range(4):
                a(f"v_cvt_pk_bf16_f32 v{g+p}, v{U+2*p}, v{U+2*p+1}")
            a(f"s_mov_b32 s{T0+2}, {i*8*224}")
            a(f"buffer_store_dwordx4 v[{g}:{g+3}], v{L.VZA}, s[{SRD_Z}:{SRD_Z+3}], s{T0+2} offen sc1"); vm.issue("z2n")
    for ph in ("a", "b"):
        for t in range(10):
            lo = ((t + (10 if ph == "b" else 0)) % NR)*SLOT
            LD.slices.append(Slice((ph, t), lo, lo + SLOT, issue(ph, t)))
    for t in range(10):
        LD.bars.append(Bar(f"a.t{t}", need=("a", t), frees=[("a", t-1)] if t else [], post0=[side_rd("a", t)], post=[side_dot("a", t)]))
    LD.bars.append(Bar("a.E", frees=[("a", 9)], pre=[fin_a]))
    for t in range(10):
        b = Bar(f"b.t{t}", need=("b", t), frees=[("b", t-1)] if t else [], post0=[side_rd("b", t)], post=[side_dot("b", t)])
        if t == 0: b.post.append(pub_stats)
        if t == 2:
            b.pre.append(lambda: LD.wait(["xs"]))
            b.post0.insert(0, flag_store(F_ST, "fst"))
        if t == T_POLL:
            b.post0.insert(0, poll_issue); b.post.append(poll_check)
        if t == T_POLL + 1:
            b.post.append(normalise)
        if t == T_POLL + 3:
            b.pre.append(lambda: LD.wait(["z2n"]))
            b.post0.insert(0, flag_store(F_Z, "fz"))
        LD.bars.append(b)
    LD.bars.append(Bar("b.E", frees=[("b", 9)], pre=[fin_b]))

class P1C:
    ACC, XF, WF, AD = 0, 64, 96, 128
    Z1P = 140
    QP = 156
    VPA, VPB = 188, 189
    T = 200
    VT15, VQ = 246, 247

def p1_consumer(a, cons, psc="", prof=None, defer_qkv=False):
    prof = prof or (lambda i: None)
    C = P1C
    ACC, XF, WF, AD, T, VT15, VQ = C.ACC, C.XF, C.WF, C.AD, C.T, C.VT15, C.VQ
    w = T0
    a(f"s_lshr_b32 s{w}, s{S_WAVE}, 1")
    a(f"s_and_b32 s{w+1}, s{S_WAVE}, 1")
    a(f"v_and_b32 v{VT15}, 15, v{VLANE}")
    a(f"v_lshrrev_b32 v{VQ}, 4, v{VLANE}")
    a(f"v_lshrrev_b32 v{T}, 1, v{VT15}")
    a(f"v_xor_b32 v{T}, v{T}, v{VQ}")
    a(f"v_lshlrev_b32 v{T}, 4, v{T}")
    a(f"v_lshl_add_u32 v{T}, v{VT15}, 7, v{T}")
    a(f"s_lshl_b32 s{w+2}, s{w}, 13")
    a(f"v_add_u32 v{AD}, s{w+2}, v{T}")
    a(f"v_xor_b32 v{AD+1}, 64, v{AD}")
    a(f"v_bfe_u32 v{T+1}, v{VLANE}, 2, 2")
    a(f"v_lshl_add_u32 v{T+2}, v{VQ}, 3, v{T+1}")
    a(f"v_lshlrev_b32 v{T+2}, 7, v{T+2}")
    a(f"v_and_b32 v{T+3}, 3, v{VLANE}")
    a(f"v_lshl_add_u32 v{T+2}, v{T+3}, 3, v{T+2}")
    a(f"v_add_u32 v{T+2}, {XPART}, v{T+2}")
    a(f"v_lshrrev_b32 v{T+1}, 1, v{T+1}")
    a(f"v_and_b32 v{T+3}, 1, v{VQ}")
    a(f"v_lshl_or_b32 v{T+1}, v{T+3}, 1, v{T+1}")
    a(f"s_lshl_b32 s{w+2}, s{w+1}, 1")
    a(f"v_xor_b32 v{T+1}, s{w+2}, v{T+1}")
    for i in range(2):
        a(f"v_xor_b32 v{T+3}, {i}, v{T+1}")
        a(f"v_lshl_add_u32 v{AD+2+i}, v{T+3}, 5, v{T+2}")
    for r in range(4):
        a(f"v_add_u32 v{AD+4+r}, {2*SLOT}, v{AD+r}")
    def reads(off):
        def f(j, step, s_):
            slot = (j + off) % NR; r0 = AD + (slot//2)*4; so = (slot % 2)*SLOT
            X = [f"ds_read_b128 v[{XF+s_*16+ta*4}:{XF+s_*16+ta*4+3}], v{r0+step} offset:{so + ta*2048}" for ta in range(4)]
            Wr = []
            for i in range(4):
                d = WF + s_*16 + i*4; o = so + (i//2)*8192 + step*4096
                Wr.append([f"ds_read_b64_tr_b16 v[{d}:{d+1}], v{r0+2+(i%2)} offset:{o}",
                           f"ds_read_b64_tr_b16 v[{d+2}:{d+3}], v{r0+2+(i%2)} offset:{o+512}"])
            return [X[0]] + Wr[0] + Wr[1] + [X[1]] + Wr[2] + Wr[3] + [X[2], X[3]]
        return f
    def mfmas(s_, first):
        r = []
        for ta in range(4):
            for i in range(4):
                acc = ACC + (ta*4+i)*4
                c = "0" if first else f"v[{acc}:{acc+3}]"
                r.append(f"v_mfma_f32_16x16x32_bf16 v[{acc}:{acc+3}], v[{WF+s_*16+i*4}:{WF+s_*16+i*4+3}], v[{XF+s_*16+ta*4}:{XF+s_*16+ta*4+3}], {c}")
        return r
    prof(0)
    kloop(a, cons, "a", 10, reads(0), mfmas, hooks={("post", 0): lambda: prof(6), ("post", 5): lambda: prof(7)})
    prof(1)
    cons.bar("a.E")
    RSv = 64
    CSv = 72
    PK = 88
    S12 = 92
    E = 100
    K0, K1, ONES = 108, 109, 110
    def tables(off):
        a(f"s_lshl_b32 s{w+2}, s{w}, 6")
        a(f"v_add_u32 v{T}, s{w+2}, v{VT15}")
        a(f"v_lshlrev_b32 v{T+1}, 3, v{T}")
        a(f"v_add_u32 v{T+1}, {L_RS}, v{T+1}")
        for ta in range(4):
            a(f"ds_read_b64 v[{RSv+2*ta}:{RSv+2*ta+1}], v{T+1} offset:{ta*128}")
        a(f"v_lshlrev_b32 v{T+2}, 4, v{VQ}")
        a(f"s_lshl_b32 s{w+2}, s{w+1}, 7")
        a(f"s_add_u32 s{w+2}, s{w+2}, {L_CS+off}")
        a(f"v_add_u32 v{T+2}, s{w+2}, v{T+2}")
        for i in range(4):
            a(f"ds_read_b128 v[{CSv+4*i}:{CSv+4*i+3}], v{T+2} offset:{(i//2)*256 + (i%2)*64}")
    def lnfold(ta, i):
        acc = ACC + (ta*4+i)*4
        for h in range(2):
            a(f"v_pk_mul_f32 v[{E+2*h}:{E+2*h+1}], v[{CSv+4*i+2*h}:{CSv+4*i+2*h+1}], v[{RSv+2*ta}:{RSv+2*ta+1}] op_sel:[0,1] op_sel_hi:[1,1]")
        for h in range(2):
            a(f"v_pk_fma_f32 v[{acc+2*h}:{acc+2*h+1}], v[{acc+2*h}:{acc+2*h+1}], v[{RSv+2*ta}:{RSv+2*ta+1}], v[{E+2*h}:{E+2*h+1}] op_sel:[0,0,0] op_sel_hi:[1,0,1]")
    def pack_pair(ta, pr, pk):
        for bi in range(2):
            acc = ACC + (ta*4+2*pr+bi)*4
            a(f"v_cvt_pk_bf16_f32 v{pk+2*bi}, v{acc}, v{acc+1}")
            a(f"v_cvt_pk_bf16_f32 v{pk+2*bi+1}, v{acc+2}, v{acc+3}")
        a("s_nop 1")
        a(f"v_permlane16_swap_b32 v{pk}, v{pk+2}")
        a(f"v_permlane16_swap_b32 v{pk+1}, v{pk+3}")
    tables(0)
    a(f"v_mov_b32 v{K0}, {f32hex(GELU_K0)}")
    a(f"v_mov_b32 v{K1}, {f32hex(GELU_K1)}")
    a(f"v_mov_b32 v{ONES}, 0x3f803f80")
    for r in range(8): a(f"v_mov_b32 v{S12+r}, 0")
    a(f"s_lshl_b32 s{w+2}, s{S_M}, 7")
    a(f"v_add_u32 v{C.VPA}, s{w+2}, v{T}")
    a(f"v_mul_u32_u24 v{C.VPA}, {P_PITCH}, v{C.VPA}")
    a(f"v_and_b32 v{T+5}, 1, v{VQ}")
    a(f"v_lshrrev_b32 v{T+6}, 1, v{VQ}")
    a(f"v_lshl_or_b32 v{T+5}, v{T+5}, 1, v{T+6}")
    a(f"v_lshl_add_u32 v{C.VPA}, v{T+5}, 4, v{C.VPA}")
    a(f"s_lshl_b32 s{w+2}, s{w+1}, 6")
    a(f"v_add_u32 v{C.VPA}, s{w+2}, v{C.VPA}")
    VGA = T + 3
    a(f"v_lshrrev_b32 v{T+6}, 1, v{VT15}")
    a(f"s_lshl_b32 s{w+2}, s{w+1}, 2")
    a(f"v_or_b32 v{T+5}, s{w+2}, v{T+5}")
    a(f"v_xor_b32 v{T+6}, v{T+6}, v{T+5}")
    a(f"v_lshlrev_b32 v{T+6}, 4, v{T+6}")
    a(f"v_lshl_add_u32 v{VGA}, v{T}, 7, v{T+6}")
    a(f"v_add_u32 v{VGA}, {L_GB}, v{VGA}")
    a(f"s_cmp_lt_u32 s{S_J}, 13")
    a(f"s_cselect_b32 s{w+2}, {hex(WS_BYTES)}, 0")
    mk_srd(a, SRD_M, P_WS, f"s{w+2}")
    S_Z1 = w + 3
    a(f"s_lshl_b32 s{S_Z1}, s{S_J}, 7")
    a(f"s_add_u32 s{S_Z1}, s{S_Z1}, {WS_P + 1920*2}")
    a("s_waitcnt lgkmcnt(0)")
    for ta in range(4):
        for i in range(4): lnfold(ta, i)
    for ta in range(4):
        pack_pair(ta, 1, C.Z1P + 4*ta)
    lz, ln = a.lab("La_z"), a.lab("La_n")
    a(f"s_add_u32 s{w+4}, s{S_J}, s{w+1}")
    a(f"s_cmp_lg_u32 s{w+4}, 0")
    a(f"s_cbranch_scc1 {lz}")
    a(f"v_mov_b32 v{E+4}, v{C.VPA}")
    a(f"s_mov_b32 s{w+4}, {WS_P + (1920+832)*2}")
    for ta in range(4):
        pack_pair(ta, 0, PK)
        a(f"buffer_store_dwordx4 v[{PK}:{PK+3}], v{E+4}, s[{SRD_M}:{SRD_M+3}], s{w+4} offen {psc}")
        a(f"v_add_u32 v{E+4}, {16*P_PITCH}, v{E+4}")
    a(f"s_branch {ln}")
    a(f"{lz}:")
    for ta in range(4):
        for bi in range(2):
            acc = ACC + (ta*4+bi)*4; p = PK + 2*bi
            for r in range(4): a(f"v_mul_f32 v{E+r}, v{acc+r}, v{acc+r}")
            for r in range(4): a(f"v_fma_f32 v{E+r}, v{E+r}, v{K1}, v{K0}")
            for r in range(4): a(f"v_mul_f32 v{E+r}, v{E+r}, v{acc+r}")
            for r in range(4): a(f"v_exp_f32 v{E+r}, v{E+r}")
            a("s_nop 0")
            for r in range(4): a(f"v_add_f32 v{E+r}, 1.0, v{E+r}")
            for r in range(4): a(f"v_rcp_f32 v{E+r}, v{E+r}")
            a("s_nop 0")
            for r in range(4): a(f"v_mul_f32 v{E+r}, v{E+r}, v{acc+r}")
            a(f"v_cvt_pk_bf16_f32 v{p}, v{E}, v{E+1}")
            a(f"v_cvt_pk_bf16_f32 v{p+1}, v{E+2}, v{E+3}")
        for p in range(PK, PK+4):
            a(f"v_dot2c_f32_bf16 v{S12+2*ta}, v{p}, v{ONES}")
            a(f"v_dot2c_f32_bf16 v{S12+2*ta+1}, v{p}, v{p}")
        a(f"v_permlane16_swap_b32 v{PK}, v{PK+2}")
        a(f"v_permlane16_swap_b32 v{PK+1}, v{PK+3}")
        a(f"ds_write_b128 v{VGA}, v[{PK}:{PK+3}] offset:{ta*2048}")
    a(f"{ln}:")
    a("s_nop 2")
    red_q(a, list(range(S12, S12+8)), list(range(E, E+8)))
    a(f"v_lshlrev_b32 v{T+1}, 3, v{T}")
    a(f"s_lshl_b32 s{w+2}, s{w+1}, 10")
    a(f"s_add_u32 s{w+2}, s{w+2}, {L_ST}")
    a(f"v_add_u32 v{T+1}, s{w+2}, v{T+1}")
    for ta in range(4):
        a(f"ds_write_b64 v{T+1}, v[{S12+2*ta}:{S12+2*ta+1}] offset:{ta*128}")
    a("s_waitcnt lgkmcnt(0)")
    prof(2)
    hooks = {}
    def z1_store(ta):
        def f():
            if ta == 0: a(f"v_mov_b32 v{C.VPB}, v{C.VPA}")
            a(f"buffer_store_dwordx4 v[{C.Z1P+4*ta}:{C.Z1P+4*ta+3}], v{C.VPB}, s[{SRD_M}:{SRD_M+3}], s{S_Z1} offen {psc}")
            a(f"v_add_u32 v{C.VPB}, {16*P_PITCH}, v{C.VPB}")
        return f
    for ta in range(4): hooks[("pre", 1 + 2*ta)] = z1_store(ta)
    kloop(a, cons, "b", 10, reads(10), mfmas, hooks=hooks)
    prof(3)
    cons.bar("b.E")
    tables(512)
    a(f"s_cmp_lt_u32 s{S_J}, 15")
    a(f"s_cselect_b32 s{w+2}, {hex(WS_BYTES)}, 0")
    mk_srd(a, SRD_M, P_WS, f"s{w+2}")
    S_Q = w + 3
    a(f"s_lshl_b32 s{S_Q}, s{S_J}, 8")
    a(f"s_add_u32 s{S_Q}, s{S_Q}, {WS_P}")
    a("s_waitcnt lgkmcnt(0)")
    stores = []
    for ta in range(4):
        for pr in range(2):
            lnfold(ta, 2*pr); lnfold(ta, 2*pr+1)
            pk = C.QP + (ta*2+pr)*4
            pack_pair(ta, pr, pk)
    def q_store(ta, pr):
        def f():
            if ta == 0 and pr == 0: a(f"v_mov_b32 v{C.VPB}, v{C.VPA}")
            pk = C.QP + (ta*2+pr)*4
            a(f"buffer_store_dwordx4 v[{pk}:{pk+3}], v{C.VPB}, s[{SRD_M}:{SRD_M+3}], s{S_Q} offen offset:{pr*128} {psc}")
            if pr == 1 and ta < 3: a(f"v_add_u32 v{C.VPB}, {16*P_PITCH}, v{C.VPB}")
        return f
    stores = [q_store(ta, pr) for ta in range(4) for pr in range(2)]
    prof(4)
    if not defer_qkv:
        for f in stores: f()
    return stores
```

```python
from asmgen import *

S_KA   = 0
S_WG   = 2
S_WAVE = 3
SRD_A  = 4
SRD_WS = 8
SRD_B  = 12
S_T0   = 20
S_TB   = 32
S_FB   = 33
S_XOFF = 34
S_WOFF = 35
S_M0X  = 36
S_M0W  = 38
S_PROF = 44

GELU_K0 = -2.0*0.7978845608028654*1.4426950408889634
GELU_K1 = GELU_K0*0.044715

def f32hex(x):
    import struct
    return hex(struct.unpack("<I", struct.pack("<f", x))[0])

def emit_p2_ids(a):
    a(f"s_and_b32 s{S_T0}, s{S_WG}, 7")
    a(f"s_lshr_b32 s{S_T0+1}, s{S_WG}, 3")
    a(f"s_lshr_b32 s{S_TB}, s{S_T0}, 1")
    a(f"s_lshl_b32 s{S_TB}, s{S_TB}, 3")
    a(f"s_lshr_b32 s{S_T0+2}, s{S_T0+1}, 2")
    a(f"s_add_u32 s{S_TB}, s{S_TB}, s{S_T0+2}")
    a(f"s_and_b32 s{S_FB}, s{S_T0}, 1")
    a(f"s_lshl_b32 s{S_FB}, s{S_FB}, 2")
    a(f"s_and_b32 s{S_T0+2}, s{S_T0+1}, 3")
    a(f"s_add_u32 s{S_FB}, s{S_FB}, s{S_T0+2}")

P2_R = 5
P2_SLOT = 24576
P2_XB = 0
P2_WB = 8192
P2_NS = 32

def p2_loader(a, vlane, ring_base=0, nslices=P2_NS):
    VX0, VX1, VW = 10, 11, 12
    T = 20
    w = S_T0
    a(f"s_sub_u32 s{w}, s{S_WAVE}, 4")
    for k in range(2):
        a(f"s_lshl_b32 s{w+1}, s{w}, 4")
        a(f"s_add_u32 s{w+1}, s{w+1}, {8*k}")
        a(f"v_lshrrev_b32 v{T}, 3, v{vlane}")
        a(f"v_add_u32 v{T}, s{w+1}, v{T}")
        a(f"v_lshrrev_b32 v{T+1}, 1, v{T}")
        a(f"v_and_b32 v{T+1}, 7, v{T+1}")
        a(f"v_and_b32 v{T+2}, 7, v{vlane}")
        a(f"v_xor_b32 v{T+1}, v{T+1}, v{T+2}")
        a(f"s_lshl_b32 s{w+2}, s{S_TB}, 6")
        a(f"v_add_u32 v{T}, s{w+2}, v{T}")
        a(f"v_lshlrev_b32 v{T}, 12, v{T}")
        a(f"v_lshlrev_b32 v{T+1}, 4, v{T+1}")
        a(f"v_add_u32 v{VX0+k}, v{T}, v{T+1}")
        a(f"s_lshl_b32 s{S_M0X+k}, s{w}, 11")
        a(f"s_add_u32 s{S_M0X+k}, s{S_M0X+k}, {ring_base + P2_XB + k*1024}")
    for k in range(4):
        a(f"s_lshl_b32 s{w+1}, s{w}, 3")
        a(f"s_add_u32 s{w+1}, s{w+1}, {32*k}")
        a(f"v_lshrrev_b32 v{T}, 3, v{vlane}")
        a(f"v_add_u32 v{T}, s{w+1}, v{T}")
        a(f"v_mul_u32_u24 v{T+1}, 4370, v{T}")
        a(f"v_lshrrev_b32 v{T+1}, 16, v{T+1}")
        a(f"v_mul_u32_u24 v{T+2}, 15, v{T+1}")
        a(f"v_sub_u32 v{T+2}, v{T}, v{T+2}")
        a(f"v_mul_u32_u24 v{T+3}, 1792, v{T+1}")
        a(f"v_lshlrev_b32 v{T+4}, 7, v{T+2}")
        a(f"v_add_u32 v{T+3}, v{T+3}, v{T+4}")
        a(f"v_and_b32 v{T+4}, 7, v{vlane}")
        a(f"v_lshlrev_b32 v{T+4}, 4, v{T+4}")
        a(f"v_add_u32 v{T+3}, v{T+3}, v{T+4}")
        a(f"v_cmp_eq_u32 vcc, 14, v{T+2}")
        a(f"v_mov_b32 v{T+5}, 0x40000000")
        a(f"v_cndmask_b32 v{T+3}, v{T+3}, v{T+5}, vcc")
        a(f"v_cmp_le_u32 vcc, 8, v{T+1}")
        a("s_nop 1")
        a(f"v_cndmask_b32 v{VW+k}, v{T+3}, v{T+5}, vcc")
        a(f"s_lshl_b32 s{S_M0W+k}, s{w}, 10")
        a(f"s_add_u32 s{S_M0W+k}, s{S_M0W+k}, {ring_base + P2_WB + k*4096}")
    a(f"s_mov_b32 s{S_XOFF}, 0")
    a(f"s_mul_i32 s{S_WOFF}, s{S_FB}, {2048*224}")
    a(f"s_add_u32 s{S_WOFF}, s{S_WOFF}, {WS_Z2N}")
    vm = VM()
    def issue(j):
        slot = (j % P2_R) * P2_SLOT
        for k in range(2):
            a(f"s_add_u32 m0, s{S_M0X+k}, {slot}")
            a("s_nop 0")
            a(f"buffer_load_dwordx4 v{VX0+k}, s[{SRD_A}:{SRD_A+3}], s{S_XOFF} offen lds")
            vm.issue(("s", j))
        for k in range(4):
            a(f"s_add_u32 m0, s{S_M0W+k}, {slot}")
            a("s_nop 0")
            a(f"buffer_load_dwordx4 v{VW+k}, s[{SRD_WS}:{SRD_WS+3}], s{S_WOFF} offen lds")
            vm.issue(("s", j))
        a(f"s_add_u32 s{S_XOFF}, s{S_XOFF}, 128")
        a(f"s_add_u32 s{S_WOFF}, s{S_WOFF}, 14336")
    for j in range(min(P2_R, nslices)):
        issue(j)
    ticks = 0
    for t in range(nslices):
        n = vm.need({("s", t)})
        a(f"s_waitcnt vmcnt({n})")
        a("s_barrier"); ticks += 1
        if t >= 1 and t - 1 + P2_R < nslices:
            issue(t - 1 + P2_R)
    return ticks

def p2_consumer(a, vlane, ring_base=0, nslices=P2_NS, prof=None):
    ACC = 0
    XF  = 32
    WF  = 48
    AX  = 80
    AW  = 86
    T   = 92
    Z1  = 100
    w = S_T0
    a(f"s_lshr_b32 s{w}, s{S_WAVE}, 1")
    a(f"s_and_b32 s{w+1}, s{S_WAVE}, 1")
    a(f"v_and_b32 v{T}, 15, v{vlane}")
    a(f"v_lshrrev_b32 v{T+1}, 4, v{vlane}")
    a(f"v_lshrrev_b32 v{T+2}, 1, v{T}")
    a(f"v_xor_b32 v{T+2}, v{T+2}, v{T+1}")
    a(f"s_lshl_b32 s{w+2}, s{w}, 5")
    a(f"v_add_u32 v{T+3}, s{w+2}, v{T}")
    a(f"v_lshlrev_b32 v{T+3}, 7, v{T+3}")
    a(f"v_lshlrev_b32 v{T+4}, 4, v{T+2}")
    a(f"v_add_u32 v{AX}, v{T+3}, v{T+4}")
    a(f"v_xor_b32 v{T+4}, 64, v{T+4}")
    a(f"v_add_u32 v{AX+1}, v{T+3}, v{T+4}")
    a(f"v_mul_u32_u24 v{T+3}, 1920, v{T+1}")
    a(f"v_lshrrev_b32 v{T+4}, 2, v{T}")
    a(f"v_mul_u32_u24 v{T+4}, 224, v{T+4}")
    a(f"v_add_u32 v{T+3}, v{T+3}, v{T+4}")
    a(f"v_and_b32 v{T+4}, 3, v{T}")
    a(f"v_lshlrev_b32 v{T+4}, 3, v{T+4}")
    a(f"v_add_u32 v{T+3}, v{T+3}, v{T+4}")
    a(f"s_lshl_b32 s{w+2}, s{w+1}, 7")
    a(f"v_add_u32 v{AW}, s{w+2}, v{T+3}")
    for st in range(3):
        base = ring_base + st*2*P2_SLOT
        if st == 0:
            if base:
                for r in (AX, AX+1, AW): a(f"v_add_u32 v{r}, {base}, v{r}")
        else:
            a(f"v_add_u32 v{AX+2*st}, {2*P2_SLOT*st}, v{AX}")
            a(f"v_add_u32 v{AX+2*st+1}, {2*P2_SLOT*st}, v{AX+1}")
            a(f"v_add_u32 v{AW+st}, {2*P2_SLOT*st}, v{AW}")
    a(f"s_lshl_b32 s{w+2}, s{S_TB}, 6")
    a(f"s_lshl_b32 s{w+3}, s{w}, 5")
    a(f"s_add_u32 s{w+2}, s{w+2}, s{w+3}")
    a(f"v_add_u32 v{T+5}, s{w+2}, v{T}")
    a(f"v_mul_u32_u24 v{T+6}, {P_PITCH}, v{T+5}")
    a(f"s_mul_i32 s{w+3}, s{S_FB}, 224")
    a(f"s_lshl_b32 s{w+4}, s{w+1}, 7")
    a(f"s_add_u32 s{w+3}, s{w+3}, s{w+4}")
    a(f"s_add_u32 s{w+3}, s{w+3}, {WS_P + 1920*2}")
    a(f"v_lshlrev_b32 v{T+7}, 3, v{T+1}")
    a(f"v_add_u32 v{T+6}, v{T+6}, v{T+7}")
    for ta in range(2):
        for b in range(4):
            a(f"buffer_load_dwordx2 v[{Z1+(ta*4+b)*2}:{Z1+(ta*4+b)*2+1}], v{T+6}, s[{SRD_WS}:{SRD_WS+3}], s{w+3} offen offset:{b*32}")
        if ta == 0:
            a(f"v_add_u32 v{T+6}, {16*P_PITCH}, v{T+6}")
    BS = 116
    a(f"v_lshlrev_b32 v{T+7}, 1, v{T+5}")
    a(f"buffer_load_ushort v{BS}, v{T+7}, s[{SRD_B}:{SRD_B+3}], 0 offen")
    a(f"buffer_load_ushort v{BS+1}, v{T+7}, s[{SRD_B}:{SRD_B+3}], 0 offen offset:32")

    def reads(j, step, st):
        slot = j % P2_R
        aset = slot // 2
        so = (slot % 2) * P2_SLOT
        r = []
        for ta in range(2):
            d = XF + st*8 + ta*4
            r.append(f"ds_read_b128 v[{d}:{d+3}], v{AX+2*aset+step} offset:{so + P2_XB + ta*2048}")
        for b in range(4):
            d = WF + st*16 + b*4
            o = so + P2_WB + step*7680 + b*32
            r.append(f"ds_read_b64_tr_b16 v[{d}:{d+1}], v{AW+aset} offset:{o}")
            r.append(f"ds_read_b64_tr_b16 v[{d+2}:{d+3}], v{AW+aset} offset:{o+896}")
        return r
    def mfmas(st, first):
        r = []
        for ta in range(2):
            for b in range(4):
                acc = ACC + (ta*4+b)*4
                c = "0" if first else f"v[{acc}:{acc+3}]"
                r.append(f"v_mfma_f32_16x16x32_bf16 v[{acc}:{acc+3}], v[{WF+st*16+b*4}:{WF+st*16+b*4+3}], v[{XF+st*8+ta*4}:{XF+st*8+ta*4+3}], {c}")
        return r
    def interleave(m, r):
        out = []
        ri = 0
        for i, x in enumerate(m):
            out.append(x)
            k = 2 if i < 4 else 1
            for _ in range(k):
                if ri < len(r):
                    out.append(r[ri]); ri += 1
        out += r[ri:]
        return out
    if prof: prof(0)
    a("s_barrier")
    ticks = 1
    if prof: prof(1)
    for x in reads(0, 0, 0): a(x)
    for t in range(nslices):
        a("s_waitcnt lgkmcnt(0)")
        for x in interleave(mfmas(0, t == 0), reads(t, 1, 1)): a(x)
        a("s_waitcnt lgkmcnt(0)")
        if t < nslices - 1:
            a("s_barrier"); ticks += 1
            for x in interleave(mfmas(1, False), reads(t+1, 0, 0)): a(x)
        else:
            for x in mfmas(1, False): a(x)
    if prof: prof(2)
    a("s_waitcnt vmcnt(0)")
    K0, K1 = 120, 121
    a(f"v_mov_b32 v{K0}, {f32hex(GELU_K0)}")
    a(f"v_mov_b32 v{K1}, {f32hex(GELU_K1)}")
    a(f"v_lshlrev_b32 v{BS}, 16, v{BS}")
    a(f"v_lshlrev_b32 v{BS+1}, 16, v{BS+1}")
    a(f"s_cmp_eq_u32 s{S_FB}, 7")
    a(f"s_cselect_b32 s{w+5}, s{w+1}, 0")
    a(f"s_cmp_eq_u32 s{w+5}, 1")
    a(f"s_cselect_b32 s{w+5}, 0, -1")
    U, E = 124, 132
    PK = 140
    for ta in range(2):
        for b in range(4):
            z = Z1 + (ta*4+b)*2
            acc = ACC + (ta*4+b)*4
            a(f"v_lshlrev_b32 v{U}, 16, v{z}")
            a(f"v_and_b32 v{U+1}, 0xffff0000, v{z}")
            a(f"v_lshlrev_b32 v{U+2}, 16, v{z+1}")
            a(f"v_and_b32 v{U+3}, 0xffff0000, v{z+1}")
            for r in range(4): a(f"v_mul_f32 v{E+r}, v{U+r}, v{U+r}")
            for r in range(4): a(f"v_fma_f32 v{E+r}, v{E+r}, v{K1}, v{K0}")
            for r in range(4): a(f"v_mul_f32 v{E+r}, v{E+r}, v{U+r}")
            for r in range(4): a(f"v_exp_f32 v{E+r}, v{E+r}")
            for r in range(4): a(f"v_add_f32 v{acc+r}, v{acc+r}, v{BS+ta}")
            for r in range(4): a(f"v_add_f32 v{E+r}, 1.0, v{E+r}")
            for r in range(4): a(f"v_rcp_f32 v{E+r}, v{E+r}")
            for r in range(4): a(f"v_mul_f32 v{U+r}, v{U+r}, v{acc+r}")
            for r in range(4): a(f"v_mul_f32 v{U+r}, v{U+r}, v{E+r}")
            p = PK + (ta*4+b)*2
            a(f"v_cvt_pk_bf16_f32 v{p}, v{U}, v{U+1}")
            a(f"v_cvt_pk_bf16_f32 v{p+1}, v{U+2}, v{U+3}")
            if b >= 1:
                a(f"v_and_b32 v{p}, s{w+5}, v{p}")
                a(f"v_and_b32 v{p+1}, s{w+5}, v{p+1}")
    a(f"v_mul_u32_u24 v{T+6}, {H_PITCH}, v{T+5}")
    a(f"v_and_b32 v{T+7}, 1, v{T+1}")
    a(f"v_lshlrev_b32 v{T+7}, 5, v{T+7}")
    a(f"v_lshrrev_b32 v{T+8}, 1, v{T+1}")
    a(f"v_lshlrev_b32 v{T+8}, 4, v{T+8}")
    a(f"v_add_u32 v{T+6}, v{T+6}, v{T+7}")
    a(f"v_add_u32 v{T+6}, v{T+6}, v{T+8}")
    a(f"s_mul_i32 s{w+3}, s{S_FB}, 224")
    a(f"s_lshl_b32 s{w+4}, s{w+1}, 7")
    a(f"s_add_u32 s{w+3}, s{w+3}, s{w+4}")
    a(f"s_add_u32 s{w+3}, s{w+3}, {WS_H}")
    a(f"v_and_b32 v{T+7}, 1, v{T+1}")
    a(f"v_and_b32 v{T+7}, s{w+1}, v{T+7}")
    a(f"v_cmp_eq_u32 s[{w+6}:{w+7}], 0, v{T+7}")
    for ta in range(2):
        for pr in range(2):
            p0 = PK + (ta*4+2*pr)*2; p1 = p0 + 2
            a("s_nop 1")
            a(f"v_permlane16_swap_b32 v{p0}, v{p1}")
            a(f"v_permlane16_swap_b32 v{p0+1}, v{p1+1}")
            if pr == 1:
                a(f"s_mov_b64 s[{w+8}:{w+9}], exec")
                a(f"s_mov_b64 exec, s[{w+6}:{w+7}]")
            a(f"buffer_store_dwordx4 v[{p0}:{p0+3}], v{T+6}, s[{SRD_WS}:{SRD_WS+3}], s{w+3} offen offset:{pr*64}")
            if pr == 1:
                a(f"s_mov_b64 exec, s[{w+8}:{w+9}]")
        if ta == 0:
            a(f"v_add_u32 v{T+6}, {16*H_PITCH}, v{T+6}")
    if prof: prof(3)
    return ticks
```

```python
from asmgen import Asm, VM, kernel_desc
import struct

KNAME = "recurrent_scan__sliding_local_dilated__mixer_gmlp__prompt_kernel"
VLANE = 250
LDS_BYTES = 163840
OOB = 0x40000000

WS_QKV  = 0x0000000
QKV_T   = 240*256
WS_Z1   = 0x0800000
Z1_T    = 112*256
WS_Z2N  = 0x0C00000
Z2_B    = 65536
WS_H    = 0x1000000
H_T     = 112*256
WS_O    = 0x1400000
O_T     = 80*256
WS_WB   = 0x1800000
WB_CB   = 48*5120
WS_XS   = 0x1B00000
WS_RSG  = WS_XS + 0x80000
WS_FLAG = 0x1E00000
WS_PROF = 0x1F00000
WS_BYTES = 268435456
F_REF  = WS_FLAG
F_W    = WS_FLAG + 0x1000
F_Z    = WS_FLAG + 0x3000
F_P    = WS_FLAG + 0x4000
F_H    = WS_FLAG + 0x5000
F_O    = WS_FLAG + 0x6000

S_WG, S_WAVE = 2, 3
SRD_X, SRD_WS, SRD_W, SRD_M = 4, 8, 12, 16
T0 = 20
S_M, S_J, S_NONCE, S_LW = 32, 33, 34, 35
S_TB, S_FB = 36, 37
S_A = 38
SRD_Z = 60
PTR = 64
P_X, P_WQKV, P_WO, P_BX, P_WIN, P_WSP, P_BSP, P_WOUT, P_OUT, P_DBG, P_WS = [64+2*i for i in range(11)]
S_PROF = 86
S_T00 = 58

def f32hex(x):
    return hex(struct.unpack("<I", struct.pack("<f", x))[0])
GELU_K0 = -2.0*0.7978845608028654*1.4426950408889634
GELU_K1 = GELU_K0*0.044715
LOG2E = 1.4426950408889634

def load_ptrs(a):
    a(f"s_load_dwordx16 s[64:79], s[0:1], 0")
    a(f"s_load_dwordx4 s[80:83], s[0:1], 64")
    a(f"s_load_dwordx2 s[84:85], s[0:1], 80")

def mk_srd(a, dst, ptr, nbytes):
    a(f"s_mov_b32 s{dst}, s{ptr}")
    a(f"s_mov_b32 s{dst+1}, s{ptr+1}")
    a(f"s_mov_b32 s{dst+2}, {hex(nbytes) if isinstance(nbytes,int) else nbytes}")
    a(f"s_mov_b32 s{dst+3}, 0x20000")

import os
PROFBAR = os.environ.get("PROFBAR", "") in ("1", "2")
PROFRT = os.environ.get("PROFBAR", "") == "2"
MEMTIME = "s_memrealtime" if PROFRT else "s_memtime"
VPROF = 248
NSTAMP = 128
def prof_dump_v(a):
    a("s_waitcnt lgkmcnt(0)")
    a(f"v_writelane_b32 v{VPROF+1}, s{S_T00}, 63")
    a(f"s_lshl_b32 s20, s{S_WG}, 3")
    a(f"s_add_u32 s20, s20, s{S_WAVE}")
    a("s_lshl_b32 s20, s20, 9")
    a(f"s_add_u32 s20, s20, {WS_PROF + 0x10000}")
    a(f"v_lshlrev_b32 v2, 2, v{VLANE}")
    a(f"buffer_store_dword v{VPROF}, v2, s[{SRD_WS}:{SRD_WS+3}], s20 offen")
    a(f"buffer_store_dword v{VPROF+1}, v2, s[{SRD_WS}:{SRD_WS+3}], s20 offen offset:256")

class Role:
    def __init__(self, a):
        self.a = a; self.names = []; self.vm = VM(); self.done = 0
    def stamp(self, idx):
        a = self.a
        a(f"{MEMTIME} s[{S_PROF}:{S_PROF+1}]")
        a("s_waitcnt lgkmcnt(0)")
        a(f"v_writelane_b32 v{VPROF + (idx >> 6)}, s{S_PROF}, {idx & 63}")
    def bar(self, name):
        if PROFBAR and len(self.names) < NSTAMP-2: self.stamp(len(self.names))
        self.a(f"s_barrier   ; {name}"); self.names.append(name)
    def wait(self, tags):
        if isinstance(tags, str) or isinstance(tags, tuple): tags = [tags]
        n = self.vm.need(set(tags))
        assert n is not None, tags
        tot = len(self.vm.ops)
        if tot - n <= self.done: return
        n = min(n, 63)
        self.done = tot - n
        self.a(f"s_waitcnt vmcnt({n})")
    def issue(self, tag): self.vm.issue(tag)

class Slice:
    def __init__(self, tag, lo, hi, issue, minbar=None):
        self.tag, self.lo, self.hi, self.issue, self.minbar = tag, lo, hi, issue, minbar

class DMA(Role):
    def __init__(self, a):
        super().__init__(a); self.slices = []; self.bars = []; self.pre_first = []
    def emit(self):
        live = []; nxt = 0; done = set()
        def try_issue():
            nonlocal nxt
            while nxt < len(self.slices):
                s = self.slices[nxt]
                if s.minbar is not None and s.minbar not in done: break
                if any(not (s.hi <= o.lo or o.hi <= s.lo) for o in live): break
                s.issue(); live.append(s); nxt += 1
        try_issue()
        for f in self.pre_first: f()
        for (name, need, frees) in self.bars:
            if need is not None:
                need = need if isinstance(need, list) else [need]
                for n_ in need: assert n_ in self.vm.ops, f"slice {n_} not issued before barrier {name}"
                self.wait(need)
            self.bar(name); done.add(name)
            live[:] = [o for o in live if o.tag not in frees]
            try_issue()
        assert nxt == len(self.slices), "unissued slices"

class Side(Role):
    def __init__(self, a):
        super().__init__(a); self.pre = {}; self.post = {}
    def at_pre(self, name, f): self.pre.setdefault(name, []).append(f)
    def at_post(self, name, f): self.post.setdefault(name, []).append(f)
    def emit(self, names):
        used = set()
        for n in names:
            for f in self.pre.get(n, []): f()
            self.bar(n)
            for f in self.post.get(n, []): f()
            used.add(n)
        for k in list(self.pre) + list(self.post): assert k in used, k

def interleave(m, r):
    out = []; ri = 0
    n2 = max(0, len(r) - len(m) + 2)
    for i, x in enumerate(m):
        out.append(x)
        k = 2 if i < max(n2, len(r)//3) else 1
        for _ in range(k):
            if ri < len(r):
                out.append(r[ri]); ri += 1
    out += r[ri:]
    return out

def interleave3(m, r, e):
    if not e: return interleave(m, r)
    base = interleave(m, r)
    out = []; ei = 0; nm = len(m); seen = 0
    mset = set(id(x) for x in m)
    for x in base:
        out.append(x)
        if id(x) in mset:
            seen += 1
            want = (len(e)*seen + nm - 1)//nm
            while ei < want: out.append(e[ei]); ei += 1
    out += e[ei:]
    return out

def kloop(a, cons, name, nslices, reads, mfmas, hooks=None, extra=None):
    hooks = hooks or {}
    extra = extra or (lambda t, s: [])
    def hk(k):
        for f in hooks.get(k, []): f()
    def emit(lst):
        for x in lst:
            if callable(x): x()
            else: a(x)
    hk(("pre", 0))
    cons.bar(f"{name}.t0")
    hk(("post", 0))
    for x in reads(0, 0, 0): a(x)
    for t in range(nslices):
        last = t == nslices - 1
        a("s_waitcnt lgkmcnt(0)")
        emit(interleave3(mfmas(t, 0, 0), reads(t, 1, 1), extra(t, 0)))
        a("s_waitcnt lgkmcnt(0)")
        if not last:
            hk(("pre", t+1))
            cons.bar(f"{name}.t{t+1}")
            hk(("post", t+1))
            emit(interleave3(mfmas(t, 1, 1), reads(t+1, 0, 0), extra(t, 1)))
        else:
            emit(interleave3(mfmas(t, 1, 1), [], extra(t, 1)))

def poll_loop(a, issue_fn, check_fn, lab, active_scc=None, limit=4000, cnt=T0+10):
    lp, ok = a.lab(lab), a.lab(lab + "ok")
    a(f"s_mov_b32 s{cnt}, 0")
    a(f"{lp}:")
    check_fn()
    a("s_nop 3")
    a("s_cmp_eq_u64 vcc, 0")
    a(f"s_cbranch_scc1 {ok}")
    a(f"s_add_u32 s{cnt}, s{cnt}, 1")
    a(f"s_cmp_gt_u32 s{cnt}, {limit}")
    a(f"s_cbranch_scc1 {ok}")
    issue_fn()
    a("s_waitcnt vmcnt(0)")
    a(f"s_branch {lp}")
    a(f"{ok}:")
```

```python
from fw import *
import os
VAR = os.environ.get('KVAR', '')

XPART = 16384
SLOT, NR = 32768, 4
AUX = NR*SLOT
L_GB = AUX
L_RS = AUX + 16384
L_CS = L_RS + 1024
L_ST = L_CS + 1024
L_ZT = L_ST + 2048

def ids(a):
    a(f"s_and_b32 s{T0}, s{S_WG}, 7")
    a(f"s_lshr_b32 s{T0+1}, s{S_WG}, 3")
    a(f"s_lshr_b32 s{T0+2}, s{T0+1}, 2")
    a(f"s_and_b32 s{T0+3}, s{T0+1}, 3")
    a(f"s_and_b32 s{T0+4}, s{T0}, 1")
    a(f"s_lshr_b32 s{T0+5}, s{T0}, 1")
    a(f"s_lshl_b32 s{S_M}, s{T0+4}, 3")
    a(f"s_add_u32 s{S_M}, s{S_M}, s{T0+2}")
    a(f"s_lshl_b32 s{S_J}, s{T0+5}, 2")
    a(f"s_add_u32 s{S_J}, s{S_J}, s{T0+3}")
    a(f"s_lshl_b32 s{S_TB}, s{T0+5}, 3")
    a(f"s_add_u32 s{S_TB}, s{S_TB}, s{T0+2}")
    a(f"s_lshl_b32 s{S_FB}, s{T0+4}, 2")
    a(f"s_add_u32 s{S_FB}, s{S_FB}, s{T0+3}")
    a(f"s_and_b32 s{S_LW}, s{S_WAVE}, 1")

def nonce_fin(a):
    a("s_waitcnt lgkmcnt(0)")
    a(f"s_mul_i32 s{S_NONCE}, s{S_NONCE}, 1664525")
    a(f"s_add_u32 s{S_NONCE}, s{S_NONCE}, 1013904223")

def wa_cols(a, d0, d1):
    a(f"s_add_u32 s{d0}, s{S_J}, 13")
    a(f"s_min_u32 s{d0}, s{d0}, 26")
    a(f"s_lshl_b32 s{d0}, s{d0}, 7")
    a(f"s_min_u32 s{d1}, s{S_J}, 12")
    a(f"s_lshl_b32 s{d1}, s{d1}, 7")

def srd_win(a, dst):
    a(f"s_cmp_lt_u32 s{S_J}, 14")
    a(f"s_cselect_b32 s{T0}, {640*3456}, 0")
    mk_srd(a, dst, P_WIN, f"s{T0}")
def srd_wqkv(a, dst):
    a(f"s_cmp_lt_u32 s{S_J}, 15")
    a(f"s_cselect_b32 s{T0}, {640*3840}, 0")
    mk_srd(a, dst, P_WQKV, f"s{T0}")

class DR:
    VX, VWA, VWB = 10, 18, 22
    T = 80
    S_WA0, S_WA1, S_WBB, S_M0, S_XOFF = S_A, S_A+1, S_A+2, S_A+3, S_A+4

def p1_dma(D):
    a = D.a; T = DR.T; w = f"s{S_LW}"
    mk_srd(a, SRD_X, P_X, 2048*1280)
    srd_win(a, SRD_W)
    a(f"s_lshl_b32 s{DR.S_M0}, {w}, 10")
    a(f"v_lshrrev_b32 v{T}, 3, v{VLANE}")
    a(f"v_lshrrev_b32 v{T+1}, 4, v{VLANE}")
    a(f"v_and_b32 v{T+3}, 7, v{VLANE}")
    a(f"s_lshl_b32 s{T0+1}, {w}, 2")
    a(f"v_add_u32 v{T+2}, s{T0+1}, v{T+1}")
    a(f"v_xor_b32 v{T+2}, v{T+2}, v{T+3}")
    a(f"s_lshl_b32 s{T0+1}, s{S_M}, 7")
    a(f"s_lshl_b32 s{T0+2}, {w}, 3")
    a(f"s_add_u32 s{T0+1}, s{T0+1}, s{T0+2}")
    a(f"v_add_u32 v{T+4}, s{T0+1}, v{T}")
    a(f"v_mul_u32_u24 v{T+4}, 1280, v{T+4}")
    a(f"v_lshl_add_u32 v{DR.VX}, v{T+2}, 4, v{T+4}")
    for i in range(1, 8):
        a(f"v_add_u32 v{DR.VX+i}, {i*16*1280}, v{DR.VX}")
    a(f"v_and_b32 v{T+2}, 1, v{T+1}")
    a(f"s_lshl_b32 s{T0+1}, {w}, 1")
    a(f"v_or_b32 v{T+2}, s{T0+1}, v{T+2}")
    a(f"v_lshlrev_b32 v{T+2}, 1, v{T+2}")
    a(f"v_xor_b32 v{T+2}, v{T+2}, v{T+3}")
    a(f"v_lshlrev_b32 v{T+2}, 4, v{T+2}")
    a(f"v_add_u32 v{T+4}, s{T0+2}, v{T}")
    a(f"v_mul_u32_u24 v{T+5}, 3456, v{T+4}")
    a(f"v_add_u32 v{DR.VWA}, v{T+5}, v{T+2}")
    a(f"v_mul_u32_u24 v{T+5}, 3840, v{T+4}")
    a(f"v_add_u32 v{DR.VWB}, v{T+5}, v{T+2}")
    for i in range(1, 4):
        a(f"v_add_u32 v{DR.VWA+i}, {i*16*3456}, v{DR.VWA}")
        a(f"v_add_u32 v{DR.VWB+i}, {i*16*3840}, v{DR.VWB}")
    wa_cols(a, DR.S_WA0, DR.S_WA1)
    a(f"s_lshl_b32 s{DR.S_WBB}, s{S_J}, 8")
    def issue(ph, t):
        def f():
            if ph == "b" and t == 0: srd_wqkv(a, SRD_W)
            base = ((t + (10 if ph == "b" else 0)) % NR)*SLOT
            a(f"s_mov_b32 s{DR.S_XOFF}, {t*128}")
            if ph == "a":
                a(f"s_add_u32 s{T0}, s{DR.S_WA0}, {t*64*3456}")
                a(f"s_add_u32 s{T0+1}, s{DR.S_WA1}, {t*64*3456}")
            else:
                a(f"s_add_u32 s{T0}, s{DR.S_WBB}, {t*64*3840}")
                a(f"s_add_u32 s{T0+1}, s{DR.S_WBB}, {t*64*3840 + 128}")
            VW = DR.VWA if ph == "a" else DR.VWB
            lst = [("x", i) for i in range(8)]
            wl = [("w", ln, i) for ln in range(2) for i in range(4)]
            for xx, ww in zip(lst, wl):
                i = xx[1]
                a(f"s_add_u32 m0, s{DR.S_M0}, {base + i*2048}")
                a("s_nop 0")
                a(f"buffer_load_dwordx4 v{DR.VX+i}, s[{SRD_X}:{SRD_X+3}], s{DR.S_XOFF} offen lds"); D.issue((ph, t))
                _, ln, i = ww
                a(f"s_add_u32 m0, s{DR.S_M0}, {base + XPART + ln*8192 + i*2048}")
                a("s_nop 0")
                a(f"buffer_load_dwordx4 v{VW+i}, s[{SRD_W}:{SRD_W+3}], s{T0+ln} offen lds"); D.issue((ph, t))
        return f
    for ph in ("a", "b"):
        for t in range(10):
            lo = ((t + (10 if ph == "b" else 0)) % NR)*SLOT
            D.slices.append(Slice((ph, t), lo, lo + SLOT, issue(ph, t), minbar=("a.t0" if (ph, t) == ("a", 3) else None)))
    for ph in ("a", "b"):
        for t in range(10):
            D.bars.append((f"{ph}.t{t}", (ph, t), [(ph, t-1)] if t else []))
        D.bars.append((f"{ph}.E", None, [(ph, 9)]))

class SR:
    DX, PF, WT = 10, 30, 40
    ACC = 72
    T = 80
    ZP = 100
    PL = 100
    XL = 136
    VA = 200
    TA = 216
    VST = 220
    VFZ, FZ = 221, 222

def red_q(a, regs_, tmps):
    for op in ("v_permlane32_swap_b32", "v_permlane16_swap_b32"):
        for r, t in zip(regs_, tmps): a(f"v_mov_b32 v{t}, v{r}")
        a("s_nop 1")
        for r, t in zip(regs_, tmps): a(f"{op} v{r}, v{t}")
        a("s_nop 0")
        for r, t in zip(regs_, tmps): a(f"v_add_f32 v{r}, v{r}, v{t}")

def flag_poll_ld(a, vaddr, vland, srd):
    a(f"buffer_load_dword v{vland}, v{vaddr}, s[{srd}:{srd+3}], 0 offen sc1")

TOUCH = os.environ.get("TOUCH", "1") == "1"
def p1_side(Sd):
    a = Sd.a; R = SR; T = R.T; sw = f"s{S_LW}"
    S_C0, S_C1, S_C2 = S_A, S_A+1, S_A+2
    def p0_issue():
        mk_srd(a, SRD_X, P_X, 2048*1280)
        a(f"s_lshl_b32 s{T0}, s{S_M}, 7")
        a(f"s_lshl_b32 s{T0+1}, s{S_J}, 3")
        a(f"s_add_u32 s{T0}, s{T0}, s{T0+1}")
        a(f"s_lshl_b32 s{T0+1}, {sw}, 2")
        a(f"s_add_u32 s{T0}, s{T0}, s{T0+1}")
        a(f"v_lshrrev_b32 v{T}, 4, v{VLANE}")
        a(f"v_add_u32 v{R.VA}, s{T0}, v{T}")
        a(f"v_mul_u32_u24 v{T+1}, 1280, v{R.VA}")
        a(f"v_and_b32 v{T+2}, 15, v{VLANE}")
        a(f"v_lshl_add_u32 v{T+1}, v{T+2}, 4, v{T+1}")
        for i in range(5):
            a(f"buffer_load_dwordx4 v[{R.DX+4*i}:{R.DX+4*i+3}], v{T+1}, s[{SRD_X}:{SRD_X+3}], 0 offen offset:{i*256}"); Sd.issue("p0x")
    def touch_xw():
        if not TOUCH: return
        a(f"s_and_b32 s{T0}, s{S_J}, 3")
        a(f"s_lshl_b32 s{T0}, s{T0}, 5")
        a(f"s_lshl_b32 s{T0+1}, s{S_M}, 7")
        a(f"s_add_u32 s{T0}, s{T0}, s{T0+1}")
        a(f"s_lshl_b32 s{T0+1}, {sw}, 4")
        a(f"s_add_u32 s{T0}, s{T0}, s{T0+1}")
        a(f"v_and_b32 v{T+3}, 15, v{VLANE}")
        a(f"v_add_u32 v{T+3}, s{T0}, v{T+3}")
        a(f"v_mul_u32_u24 v{T+3}, 1280, v{T+3}")
        a(f"v_lshrrev_b32 v{T+4}, 4, v{VLANE}")
        a(f"v_lshl_add_u32 v{T+3}, v{T+4}, 7, v{T+3}")
        srd_win(a, SRD_W)
        wa_cols(a, T0, T0+1)
        a(f"s_cmp_eq_u32 {sw}, 0")
        a(f"s_cselect_b32 s{T0}, s{T0}, s{T0+1}")
        a(f"s_and_b32 s{T0+1}, s{S_M}, 7")
        a(f"s_add_u32 s{T0+1}, s{T0+1}, 192")
        a(f"v_lshl_add_u32 v{T+5}, v{VLANE}, 3, s{T0+1}")
        a(f"v_mul_u32_u24 v{T+5}, 3456, v{T+5}")
        a(f"v_add_u32 v{T+5}, s{T0}, v{T+5}")
        a(f"buffer_load_dword v{R.PF}, v{T+3}, s[{SRD_X}:{SRD_X+3}], 0 offen offset:384"); Sd.issue("pf")
        a(f"buffer_load_dword v{R.PF+1}, v{T+5}, s[{SRD_W}:{SRD_W+3}], 0 offen"); Sd.issue("pf")
        a(f"buffer_load_dword v{R.PF+2}, v{T+3}, s[{SRD_X}:{SRD_X+3}], 0 offen offset:896"); Sd.issue("pf")
    def touch_qkv():
        if not TOUCH: return
        srd_wqkv(a, SRD_W)
        a(f"s_lshl_b32 s{T0}, s{S_J}, 8")
        a(f"s_lshl_b32 s{T0+1}, {sw}, 7")
        a(f"s_add_u32 s{T0}, s{T0}, s{T0+1}")
        a(f"s_and_b32 s{T0+1}, s{S_M}, 7")
        a(f"v_lshl_add_u32 v{T+5}, v{VLANE}, 3, s{T0+1}")
        a(f"v_mul_u32_u24 v{T+5}, 3840, v{T+5}")
        a(f"v_add_u32 v{T+5}, s{T0}, v{T+5}")
        a(f"v_add_u32 v{T+6}, {512*3840}, v{T+5}")
        a(f"buffer_load_dword v{R.PF+3}, v{T+5}, s[{SRD_W}:{SRD_W+3}], 0 offen"); Sd.issue("pf")
        a(f"buffer_load_dword v{R.PF+4}, v{T+6}, s[{SRD_W}:{SRD_W+3}], 0 offen"); Sd.issue("pf")
    def rowstats():
        a(f"v_mov_b32 v{T+8}, 0x3f803f80")
        for r in range(4): a(f"v_mov_b32 v{R.ACC+r}, 0")
        Sd.wait("p0x")
        for d in range(20):
            a(f"v_dot2c_f32_bf16 v{R.ACC+(d&1)}, v{R.DX+d}, v{T+8}")
            a(f"v_dot2c_f32_bf16 v{R.ACC+2+(d&1)}, v{R.DX+d}, v{R.DX+d}")
        a("s_nop 2")
        a(f"v_add_f32 v{R.ACC}, v{R.ACC}, v{R.ACC+1}")
        a(f"v_add_f32 v{R.ACC+2}, v{R.ACC+2}, v{R.ACC+3}")
        for rot in (8, 4, 2, 1):
            a("s_nop 0")
            a(f"v_add_f32_dpp v{R.ACC}, v{R.ACC}, v{R.ACC} row_ror:{rot} row_mask:0xf bank_mask:0xf")
            a(f"v_add_f32_dpp v{R.ACC+2}, v{R.ACC+2}, v{R.ACC+2} row_ror:{rot} row_mask:0xf bank_mask:0xf")
        a(f"v_mul_f32 v{R.ACC}, {f32hex(1/640)}, v{R.ACC}")
        a(f"v_mul_f32 v{T}, v{R.ACC}, v{R.ACC}")
        a(f"v_mov_b32 v{T+1}, {f32hex(1/640)}")
        a(f"v_fma_f32 v{T+2}, v{R.ACC+2}, v{T+1}, -v{T}")
        a(f"v_max_f32 v{T+2}, 0, v{T+2}")
        a(f"v_add_f32 v{T+2}, {f32hex(1e-5)}, v{T+2}")
        a(f"v_rsq_f32 v{T+4}, v{T+2}")
        a(f"v_mov_b32 v{T+5}, s{S_NONCE}")
        a(f"v_mov_b32 v{T+7}, s{S_NONCE}")
        a(f"v_mul_f32 v{T+6}, v{R.ACC}, v{T+4}")
        a(f"v_mul_f32 v{T+6}, -1.0, v{T+6}")
        a(f"v_lshlrev_b32 v{T}, 4, v{R.VA}")
        a(f"v_add_u32 v{T}, {WS_RSG}, v{T}")
        a(f"v_and_b32 v{T+1}, 15, v{VLANE}")
        a(f"v_cmp_eq_u32 vcc, 0, v{T+1}")
        a(f"v_mov_b32 v{T+2}, {hex(OOB)}")
        a("s_nop 0")
        a(f"v_cndmask_b32 v{T}, v{T+2}, v{T}, vcc")
        a(f"buffer_store_dwordx4 v[{T+4}:{T+7}], v{T}, s[{SRD_WS}:{SRD_WS+3}], 0 offen sc1"); Sd.issue("rsg")
    def rs_loads():
        a(f"buffer_load_dwordx4 v[{R.PL+32}:{R.PL+35}], v{R.VA+1}, s[{SRD_WS}:{SRD_WS+3}], 0 offen sc1")
    def tabA_issue():
        a(f"s_lshl_b32 s{T0}, s{S_M}, 7")
        a(f"s_lshl_b32 s{T0+1}, {sw}, 6")
        a(f"s_add_u32 s{T0}, s{T0}, s{T0+1}")
        a(f"v_add_u32 v{R.VA+1}, s{T0}, v{VLANE}")
        a(f"v_lshlrev_b32 v{R.VA+1}, 4, v{R.VA+1}")
        a(f"v_add_u32 v{R.VA+1}, {WS_RSG}, v{R.VA+1}")
        rs_loads(); Sd.issue("tabA")
    def tag_check(lst):
        a(f"v_xor_b32 v{T}, s{S_NONCE}, v{lst[0]}")
        for r in lst[1:]:
            a(f"v_xor_b32 v{T+1}, s{S_NONCE}, v{r}")
            a(f"v_or_b32 v{T}, v{T}, v{T+1}")
        a(f"v_cmp_ne_u32 vcc, 0, v{T}")
    def tabA_check():
        Sd.wait("tabA")
        poll_loop(a, rs_loads, lambda: tag_check([R.PL+33, R.PL+35]), "LtA")
    def tabA_write():
        a(f"s_lshl_b32 s{T0}, {sw}, 9")
        a(f"s_add_u32 s{T0}, s{T0}, {L_RS}")
        a(f"v_lshl_add_u32 v{T+4}, v{VLANE}, 3, s{T0}")
        a(f"v_mov_b32 v{R.PL+33}, v{R.PL+34}")
        a(f"ds_write_b64 v{T+4}, v[{R.PL+32}:{R.PL+33}]")
        a("s_waitcnt lgkmcnt(0)")
    def ta_setup():
        a(f"v_lshrrev_b32 v{T}, 4, v{VLANE}")
        a(f"v_bfe_u32 v{T+1}, v{VLANE}, 2, 2")
        a(f"v_and_b32 v{T+2}, 1, v{T}")
        a(f"v_lshlrev_b32 v{T+2}, 2, v{T+2}")
        a(f"v_xor_b32 v{T+2}, v{T+2}, v{T+1}")
        a(f"v_bfe_u32 v{T+3}, v{VLANE}, 1, 1")
        a(f"v_xor_b32 v{T+2}, v{T+2}, v{T+3}")
        a(f"v_lshl_add_u32 v{T+4}, v{T}, 3, v{T+1}")
        a(f"s_lshl_b32 s{T0}, {sw}, 6")
        a(f"v_add_u32 v{T+4}, s{T0}, v{T+4}")
        a(f"v_lshlrev_b32 v{T+4}, 7, v{T+4}")
        a(f"v_lshl_add_u32 v{T+4}, v{T+2}, 4, v{T+4}")
        a(f"v_and_b32 v{T+3}, 1, v{VLANE}")
        a(f"v_lshl_add_u32 v{T+4}, v{T+3}, 3, v{T+4}")
        a(f"v_add_u32 v{R.TA}, {L_GB}, v{T+4}")
        for lb in range(1, 4): a(f"v_xor_b32 v{R.TA+lb}, {lb << 5}, v{R.TA}")
        a(f"v_lshlrev_b32 v{R.VST}, 4, v{VLANE}")
    def tr_reads(dst, lb, off):
        a(f"ds_read_b64_tr_b16 v[{dst}:{dst+1}], v{R.TA+lb} offset:{off}")
        a(f"ds_read_b64_tr_b16 v[{dst+2}:{dst+3}], v{R.TA+(lb^2)} offset:{off+512}")
    for g in range(256): assert (g*52429) >> 18 == g//5
    for B in range(40): assert (B*13) >> 6 == B//5
    def wc_issue():
        a(f"s_mul_i32 s{S_C0}, s{S_WG}, 52429")
        a(f"s_lshr_b32 s{S_C0}, s{S_C0}, 18")
        a(f"s_mul_i32 s{T0}, s{S_C0}, 5")
        a(f"s_sub_u32 s{S_C1}, s{S_WG}, s{T0}")
        a(f"s_cmp_lt_u32 s{S_C0}, 20")
        a(f"s_cselect_b32 s{T0+2}, s{P_WO}, s{P_WOUT}")
        a(f"s_cselect_b32 s{T0+3}, s{P_WO+1}, s{P_WOUT+1}")
        a(f"s_mov_b32 s{T0+4}, {864*1280}")
        a(f"s_cselect_b32 s{T0+4}, {640*1280}, s{T0+4}")
        a(f"s_cselect_b32 s{T0+5}, 0, 20")
        a(f"s_cmp_lt_u32 s{S_WG}, 235")
        a(f"s_cselect_b32 s{T0+4}, s{T0+4}, 0")
        a(f"s_cselect_b32 s{S_C0}, s{S_C0}, 20")
        a(f"s_mov_b32 s{SRD_M}, s{T0+2}")
        a(f"s_mov_b32 s{SRD_M+1}, s{T0+3}")
        a(f"s_mov_b32 s{SRD_M+2}, s{T0+4}")
        a(f"s_mov_b32 s{SRD_M+3}, 0x20000")
        a(f"s_sub_u32 s{T0+5}, s{S_C0}, s{T0+5}")
        a(f"s_mul_i32 s{T0+5}, s{T0+5}, {32*1280}")
        a(f"s_lshl_b32 s{T0}, s{S_C1}, 8")
        a(f"s_lshl_b32 s{T0+1}, {sw}, 7")
        a(f"s_add_u32 s{T0}, s{T0}, s{T0+1}")
        a(f"s_add_u32 s{T0+5}, s{T0+5}, s{T0}")
        a(f"v_lshrrev_b32 v{T}, 3, v{VLANE}")
        a(f"v_and_b32 v{T+1}, 7, v{VLANE}")
        a(f"v_xor_b32 v{T+1}, v{T+1}, v{T}")
        a(f"v_mul_u32_u24 v{T}, 1280, v{T}")
        a(f"v_lshl_add_u32 v{T+2}, v{T+1}, 4, v{T}")
        a(f"v_xor_b32 v{T+3}, 64, v{T+2}")
        a(f"s_lshl_b32 s{T0}, {sw}, 13")
        a(f"s_add_u32 s{T0}, s{T0}, {L_GB}")
        for i in range(4):
            a(f"s_add_u32 m0, s{T0}, {i*1024}")
            a(f"s_add_u32 s{T0+1}, s{T0+5}, {i*8*1280}")
            a(f"buffer_load_dwordx4 v{T+2+(i&1)}, s[{SRD_M}:{SRD_M+3}], s{T0+1} offen lds"); Sd.issue("wc")
    def wc_store():
        Sd.wait("wc")
        for b in range(4): tr_reads(R.WT + 4*b, b, 0)
        a(f"s_cmp_lt_u32 s{S_WG}, 235")
        a(f"s_cselect_b32 s{T0}, {hex(WS_BYTES)}, 0")
        mk_srd(a, SRD_M, P_WS, f"s{T0}")
        a(f"s_mul_i32 s{S_C0}, s{S_C0}, 5120")
        a(f"s_add_u32 s{S_C0}, s{S_C0}, {WS_WB}")
        a(f"s_lshl_b32 s{S_C1}, s{S_C1}, 3")
        a(f"s_lshl_b32 s{T0}, {sw}, 2")
        a(f"s_add_u32 s{S_C1}, s{S_C1}, s{T0}")
        for b in range(4):
            a(f"s_add_u32 s{T0}, s{S_C1}, {b}")
            a(f"s_mul_i32 s{T0+1}, s{T0}, 13")
            a(f"s_lshr_b32 s{T0+1}, s{T0+1}, 6")
            a(f"s_mul_i32 s{T0+2}, s{T0+1}, 5")
            a(f"s_sub_u32 s{T0}, s{T0}, s{T0+2}")
            a(f"s_lshl_b32 s{T0}, s{T0}, 10")
            a(f"s_mul_i32 s{T0+1}, s{T0+1}, {WB_CB}")
            a(f"s_add_u32 s{T0}, s{T0}, s{T0+1}")
            a(f"s_add_u32 s{T0}, s{T0}, s{S_C0}")
            a(f"s_waitcnt lgkmcnt({6-2*b})")
            a(f"buffer_store_dwordx4 v[{R.WT+4*b}:{R.WT+4*b+3}], v{R.VST}, s[{SRD_M}:{SRD_M+3}], s{T0} offen sc1"); Sd.issue("wcs")
    def flag_store(addr_fn, tag):
        def f():
            addr_fn()
            a(f"s_cmp_eq_u32 {sw}, 0")
            a(f"s_cselect_b32 s{T0}, s{T0}, {hex(OOB)}")
            a(f"v_mov_b32 v{T}, {hex(OOB)}")
            a(f"v_mov_b32 v{T+1}, s{T0}")
            a(f"v_cmp_eq_u32 vcc, 0, v{VLANE}")
            a(f"v_mov_b32 v{T+2}, s{S_NONCE}")
            a("s_nop 0")
            a(f"v_cndmask_b32 v{T}, v{T}, v{T+1}, vcc")
            a(f"buffer_store_dword v{T+2}, v{T}, s[{SRD_WS}:{SRD_WS+3}], 0 offen sc1"); Sd.issue(tag)
        return f
    Sd.flag_store = flag_store
    def fw_addr():
        a(f"s_lshl_b32 s{T0}, s{S_WG}, 2")
        a(f"s_add_u32 s{T0}, s{T0}, {F_W}")
    def zok_srd():
        a(f"s_cmp_lt_u32 s{S_J}, 14")
        a(f"s_cselect_b32 s{T0}, {hex(WS_BYTES)}, 0")
        mk_srd(a, SRD_Z, P_WS, f"s{T0}")
    def pub_stats():
        zok_srd()
        a(f"s_lshl_b32 s{T0}, {sw}, 6")
        a(f"v_add_u32 v{R.VA+3}, s{T0}, v{VLANE}")
        a(f"v_lshlrev_b32 v{T}, 3, v{R.VA+3}")
        a(f"v_add_u32 v{T+1}, {L_ST}, v{T}")
        a(f"ds_read_b64 v[{T+2}:{T+3}], v{T+1}")
        a(f"ds_read_b64 v[{T+8}:{T+9}], v{T+1} offset:1024")
        a(f"s_mul_i32 s{T0}, s{S_M}, 14")
        a(f"s_add_u32 s{T0}, s{T0}, s{S_J}")
        a(f"s_lshl_b32 s{T0}, s{T0}, 11")
        a(f"s_add_u32 s{T0}, s{T0}, {WS_XS}")
        a(f"v_lshlrev_b32 v{T}, 4, v{R.VA+3}")
        a(f"v_add_u32 v{T}, s{T0}, v{T}")
        a(f"v_mov_b32 v{T+5}, s{S_NONCE}")
        a(f"v_mov_b32 v{T+7}, s{S_NONCE}")
        a("s_waitcnt lgkmcnt(0)")
        a(f"v_add_f32 v{T+4}, v{T+2}, v{T+8}")
        a(f"v_add_f32 v{T+6}, v{T+3}, v{T+9}")
        a(f"buffer_store_dwordx4 v[{T+4}:{T+7}], v{T}, s[{SRD_Z}:{SRD_Z+3}], 0 offen sc1"); Sd.issue("xs")
    def xs_loads():
        for jj in range(14):
            if jj % 2 == 0: a(f"s_mov_b32 s{T0+2}, {jj*2048}")
            a(f"buffer_load_dwordx4 v[{R.XL+4*jj}:{R.XL+4*jj+3}], v{R.VA+4}, s[{SRD_Z}:{SRD_Z+3}], s{T0+2} offen offset:{(jj%2)*2048} sc1")
    def xs_issue():
        a(f"s_mul_i32 s{T0}, s{S_M}, {14*2048}")
        a(f"s_add_u32 s{T0}, s{T0}, {WS_XS}")
        a(f"v_lshlrev_b32 v{R.VA+4}, 4, v{R.VA+3}")
        a(f"v_add_u32 v{R.VA+4}, s{T0}, v{R.VA+4}")
        xs_loads()
        for _ in range(14): Sd.issue("xsl")
    def xs_check():
        Sd.wait("xsl")
        skip = a.lab("Lxs_skip")
        a(f"s_cmp_ge_u32 s{S_J}, 14")
        a(f"s_cbranch_scc1 {skip}")
        poll_loop(a, xs_loads, lambda: tag_check([R.XL+4*jj+1 for jj in range(14)] + [R.XL+4*jj+3 for jj in range(14)]), "Lxs")
        a(f"{skip}:")
    def xs_reduce():
        PL = R.XL
        a(f"v_add_f32 v{T}, v{PL}, v{PL+4}")
        a(f"v_add_f32 v{T+1}, v{PL+2}, v{PL+6}")
        for jj in range(2, 14):
            a(f"v_add_f32 v{T}, v{T}, v{PL+4*jj}")
            a(f"v_add_f32 v{T+1}, v{T+1}, v{PL+4*jj+2}")
        a(f"v_mul_f32 v{T}, {f32hex(1/864)}, v{T}")
        a(f"v_mul_f32 v{T+2}, v{T}, v{T}")
        a(f"v_mov_b32 v{T+3}, {f32hex(1/864)}")
        a(f"v_fma_f32 v{T+1}, v{T+1}, v{T+3}, -v{T+2}")
        a(f"v_max_f32 v{T+1}, 0, v{T+1}")
        a(f"v_add_f32 v{T+1}, {f32hex(1e-5)}, v{T+1}")
        a(f"v_rsq_f32 v{T+4}, v{T+1}")
        a(f"v_lshlrev_b32 v{T+6}, 3, v{R.VA+3}")
        a(f"v_mul_f32 v{T+5}, v{T}, v{T+4}")
        a(f"v_mul_f32 v{T+5}, -1.0, v{T+5}")
        a(f"v_add_u32 v{T+6}, {L_ZT}, v{T+6}")
        a(f"ds_write_b64 v{T+6}, v[{T+4}:{T+5}]")
        a(f"s_lshl_b32 s{T0}, {sw}, 9")
        a(f"s_add_u32 s{T0}, s{T0}, {L_ZT}")
        a(f"v_lshrrev_b32 v{T}, 4, v{VLANE}")
        a(f"v_lshl_add_u32 v{R.VA+5}, v{T}, 6, s{T0}")
        a("s_waitcnt lgkmcnt(0)")
    def normalise(sp):
        def f():
            Z = R.ZP + 16*sp; D = R.WT + 16*sp; U = T + 8
            for k in range(4):
                a(f"ds_read_b128 v[{Z+4*k}:{Z+4*k+3}], v{R.VA+5} offset:{sp*256 + 16*k}")
            for lb in range(4): tr_reads(D + 4*lb, lb, sp*4096)
            a(f"s_lshl_b32 s{S_C0}, s{S_M}, 2")
            a(f"s_lshl_b32 s{T0}, {sw}, 1")
            a(f"s_add_u32 s{S_C0}, s{S_C0}, s{T0}")
            a(f"s_add_u32 s{S_C0}, s{S_C0}, {sp}")
            a(f"s_lshl_b32 s{S_C0}, s{S_C0}, 10")
            a(f"s_add_u32 s{S_C0}, s{S_C0}, {WS_Z2N}")
            for lb in range(4):
                g = D + 4*lb
                a(f"s_lshl_b32 s{T0}, s{S_J}, 2")
                a(f"s_add_u32 s{T0}, s{T0}, {lb}")
                a(f"s_sub_u32 s{T0}, s{T0}, 2")
                a(f"s_cmp_lt_u32 s{T0}, 54")
                a(f"s_cselect_b32 s{SRD_Z+2}, {hex(WS_BYTES)}, 0")
                a(f"s_cselect_b32 s{T0}, s{T0}, 0")
                a(f"s_lshl_b32 s{T0}, s{T0}, 16")
                a(f"s_add_u32 s{S_C1}, s{T0}, s{S_C0}")
                a(f"s_waitcnt lgkmcnt({6-2*lb})")
                for p in range(4):
                    a(f"v_lshlrev_b32 v{U+2*p}, 16, v{g+p}")
                    a(f"v_and_b32 v{U+2*p+1}, 0xffff0000, v{g+p}")
                for e in range(8):
                    a(f"v_fma_f32 v{U+e}, v{U+e}, v{Z+2*e}, v{Z+2*e+1}")
                for p in range(4):
                    a(f"v_cvt_pk_bf16_f32 v{g+p}, v{U+2*p}, v{U+2*p+1}")
                a(f"buffer_store_dwordx4 v[{g}:{g+3}], v{R.VST}, s[{SRD_Z}:{SRD_Z+3}], s{S_C1} offen sc1"); Sd.issue("z2n")
        return f
    def fz_addr():
        a(f"s_lshl_b32 s{T0}, s{S_M}, 7")
        a(f"s_lshl_b32 s{T0+1}, s{S_J}, 2")
        a(f"s_add_u32 s{T0}, s{T0}, s{T0+1}")
        a(f"s_add_u32 s{T0}, s{T0}, {F_Z}")
    def fz_ld(): flag_poll_ld(a, R.VFZ, R.FZ, SRD_WS)
    def fz_issue():
        a(f"s_mul_i32 s{T0}, s{S_FB}, 112")
        a(f"s_add_u32 s{T0}, s{T0}, 32")
        a(f"s_add_u32 s{T0+1}, s{T0}, 111")
        a(f"s_lshr_b32 s{T0}, s{T0}, 6")
        a(f"s_lshr_b32 s{T0+1}, s{T0+1}, 6")
        a(f"s_min_u32 s{T0+1}, s{T0+1}, 13")
        a(f"v_and_b32 v{T}, 3, v{VLANE}")
        a(f"v_add_u32 v{T}, s{T0}, v{T}")
        a(f"v_min_u32 v{T}, s{T0+1}, v{T}")
        a(f"v_lshrrev_b32 v{T+1}, 2, v{VLANE}")
        a(f"v_lshlrev_b32 v{T+1}, 7, v{T+1}")
        a(f"v_lshl_add_u32 v{T}, v{T}, 2, v{T+1}")
        a(f"v_add_u32 v{R.VFZ}, {F_Z}, v{T}")
        fz_ld(); Sd.issue("fzp")
    def fz_check():
        Sd.wait("fzp")
        poll_loop(a, fz_ld, lambda: a(f"v_cmp_ne_u32 vcc, s{S_NONCE}, v{R.FZ}"), "Lfz")
    E = os.environ.get
    Sd.at_pre("a.t0", p0_issue)
    Sd.at_pre("a.t0", touch_xw)
    Sd.at_pre("a.t0", lambda: nonce_fin(a))
    Sd.at_pre("a.t0", rowstats)
    Sd.at_post("a.t0", ta_setup)
    Sd.at_post("a.t0", wc_issue)
    Sd.at_post("a.t1", touch_qkv)
    Sd.at_post("a.t4", tabA_issue)
    Sd.at_post("a.t4", wc_store)
    Sd.at_post("a.t6", tabA_check)
    Sd.at_post("a.t7", tabA_write)
    Sd.at_pre("a.t9", lambda: Sd.wait("wcs"))
    Sd.at_post("a.t9", flag_store(fw_addr, "fw"))
    Sd.at_post("b.t0", pub_stats)
    Sd.at_post(E("T_XS", "b.t1"), xs_issue)
    Sd.at_post(E("T_XC", "b.t2"), xs_check)
    Sd.at_post(E("T_XC", "b.t2"), xs_reduce)
    Sd.at_post(E("T_N0", "b.t3"), normalise(0))
    Sd.at_post(E("T_N1", "b.t4"), normalise(1))
    Sd.at_pre(E("T_FZ", "b.t6"), lambda: Sd.wait("z2n"))
    Sd.at_post(E("T_FZ", "b.t6"), flag_store(fz_addr, "fz"))
    Sd.at_post("b.t8", fz_issue)
    Sd.at_pre("b.E", fz_check)

class C1:
    ACC, XF, WF, AD = 0, 64, 96, 128
    RSV = 136
    ACCB = 144
    CS = 208
    ONEF = 216
    CSZ = 220
    T = 228
    VT15, VQ = 246, 247
    VZ1, VQA, VCQ = 251, 252, 253

CS_POS = int(os.environ.get('CS_POS', '16'))
def p1_consumer(a, cons, post_bE=None, in_b=None, psc="sc1"):
    C = C1
    XF, WF, AD, T, VT15, VQ = C.XF, C.WF, C.AD, C.T, C.VT15, C.VQ
    w = S_A
    tmp = T0
    a(f"s_lshr_b32 s{w}, s{S_WAVE}, 1")
    a(f"s_and_b32 s{w+1}, s{S_WAVE}, 1")
    a(f"v_and_b32 v{VT15}, 15, v{VLANE}")
    a(f"v_lshrrev_b32 v{VQ}, 4, v{VLANE}")
    a(f"v_lshrrev_b32 v{T}, 1, v{VT15}")
    a(f"v_xor_b32 v{T}, v{T}, v{VQ}")
    a(f"v_lshlrev_b32 v{T}, 4, v{T}")
    a(f"v_lshl_add_u32 v{T}, v{VT15}, 7, v{T}")
    a(f"s_lshl_b32 s{tmp}, s{w}, 13")
    a(f"v_add_u32 v{AD}, s{tmp}, v{T}")
    a(f"v_xor_b32 v{AD+1}, 64, v{AD}")
    a(f"v_bfe_u32 v{T+1}, v{VLANE}, 2, 2")
    a(f"v_lshl_add_u32 v{T+2}, v{VQ}, 3, v{T+1}")
    a(f"v_lshlrev_b32 v{T+2}, 7, v{T+2}")
    a(f"v_and_b32 v{T+3}, 3, v{VLANE}")
    a(f"v_lshl_add_u32 v{T+2}, v{T+3}, 3, v{T+2}")
    a(f"v_add_u32 v{T+2}, {XPART}, v{T+2}")
    a(f"v_lshrrev_b32 v{T+1}, 1, v{T+1}")
    a(f"v_and_b32 v{T+3}, 1, v{VQ}")
    a(f"v_lshl_or_b32 v{T+1}, v{T+3}, 1, v{T+1}")
    a(f"s_lshl_b32 s{tmp}, s{w+1}, 1")
    a(f"v_xor_b32 v{T+1}, s{tmp}, v{T+1}")
    for i in range(2):
        a(f"v_xor_b32 v{T+3}, {i}, v{T+1}")
        a(f"v_lshl_add_u32 v{AD+2+i}, v{T+3}, 5, v{T+2}")
    for r in range(4):
        a(f"v_add_u32 v{AD+4+r}, {2*SLOT}, v{AD+r}")
    def reads(off):
        def f(j, step, s_):
            slot = (j + off) % NR; r0 = AD + (slot//2)*4; so = (slot % 2)*SLOT
            X = [f"ds_read_b128 v[{XF+s_*16+ta*4}:{XF+s_*16+ta*4+3}], v{r0+step} offset:{so + ta*2048}" for ta in range(4)]
            Wr = []
            for i in range(4):
                d = WF + s_*16 + i*4; o = so + (i//2)*8192 + step*4096
                Wr.append([f"ds_read_b64_tr_b16 v[{d}:{d+1}], v{r0+2+(i%2)} offset:{o}",
                           f"ds_read_b64_tr_b16 v[{d+2}:{d+3}], v{r0+2+(i%2)} offset:{o+512}"])
            return [X[0]] + Wr[0] + Wr[1] + [X[1]] + Wr[2] + Wr[3] + [X[2], X[3]]
        return f
    def mfmas(ACC):
        def f(t, step, s_):
            first = (t == 0 and step == 0)
            r = []
            for ta in range(4):
                for i in range(4):
                    acc = ACC + (ta*4+i)*4
                    c = "0" if first else f"v[{acc}:{acc+3}]"
                    r.append(f"v_mfma_f32_16x16x32_bf16 v[{acc}:{acc+3}], v[{WF+s_*16+i*4}:{WF+s_*16+i*4+3}], v[{XF+s_*16+ta*4}:{XF+s_*16+ta*4+3}], {c}")
            l1, lj = a.lab("Lcs"), a.lab("Lcj")
            def cs(i, k):
                acc = C.CS + 4*k
                c = "0" if first else f"v[{acc}:{acc+3}]"
                return f"v_mfma_f32_16x16x32_bf16 v[{acc}:{acc+3}], v[{WF+s_*16+i*4}:{WF+s_*16+i*4+3}], v[{C.ONEF}:{C.ONEF+3}], {c}"
            blk = [f"s_cmp_eq_u32 s{w}, 1", f"s_cbranch_scc1 {l1}", cs(0, 0), cs(1, 1), f"s_branch {lj}", f"{l1}:", cs(2, 0), cs(3, 1), f"{lj}:"]
            r.insert(CS_POS, "\n".join(blk))
            return r
        return f
    def cs_write(off):
        a(f"s_lshl_b32 s{tmp}, s{w}, 8")
        a(f"s_lshl_b32 s{tmp+1}, s{w+1}, 7")
        a(f"s_add_u32 s{tmp}, s{tmp}, s{tmp+1}")
        a(f"s_add_u32 s{tmp}, s{tmp}, {L_CS+off}")
        a(f"v_lshl_add_u32 v{T+2}, v{VQ}, 4, s{tmp}")
        a(f"s_mov_b32 s{tmp+2}, 0x00010001")
        a(f"s_mov_b32 s{tmp+3}, 0x00010001")
        a(f"s_mov_b64 exec, s[{tmp+2}:{tmp+3}]")
        a("s_nop 2")
        a(f"ds_write_b128 v{T+2}, v[{C.CS}:{C.CS+3}]")
        a(f"ds_write_b128 v{T+2}, v[{C.CS+4}:{C.CS+7}] offset:64")
        a("s_mov_b64 exec, -1")
        a("s_waitcnt lgkmcnt(0)")
    for r in range(4): a(f"v_mov_b32 v{C.ONEF+r}, 0x3f803f80")
    a(f"v_and_b32 v{T+5}, 1, v{VQ}")
    a(f"v_lshrrev_b32 v{T+6}, 1, v{VQ}")
    a(f"v_lshl_or_b32 v{C.VCQ}, v{T+5}, 1, v{T+6}")
    a(f"v_lshlrev_b32 v{T+5}, 8, v{C.VCQ}")
    a(f"v_lshl_add_u32 v{T+5}, v{VT15}, 4, v{T+5}")
    a(f"s_lshl_b32 s{tmp}, s{S_M}, 3")
    a(f"s_lshl_b32 s{tmp+1}, s{w}, 2")
    a(f"s_add_u32 s{tmp}, s{tmp}, s{tmp+1}")
    a(f"s_min_u32 s{tmp+1}, s{S_J}, 12")
    a(f"s_lshl_b32 s{tmp+1}, s{tmp+1}, 3")
    a(f"s_lshl_b32 s{tmp+2}, s{w+1}, 2")
    a(f"s_add_u32 s{tmp+1}, s{tmp+1}, s{tmp+2}")
    a(f"s_lshl_b32 s{tmp+1}, s{tmp+1}, 8")
    a(f"s_mul_i32 s{tmp+3}, s{tmp}, {Z1_T}")
    a(f"s_add_u32 s{tmp+1}, s{tmp+1}, s{tmp+3}")
    a(f"s_add_u32 s{tmp+1}, s{tmp+1}, {WS_Z1}")
    a(f"v_add_u32 v{C.VZ1}, s{tmp+1}, v{T+5}")
    a(f"s_min_u32 s{tmp+1}, s{S_J}, 14")
    a(f"s_lshl_b32 s{tmp+1}, s{tmp+1}, 4")
    a(f"s_add_u32 s{tmp+1}, s{tmp+1}, s{tmp+2}")
    a(f"s_lshl_b32 s{tmp+1}, s{tmp+1}, 8")
    a(f"s_mul_i32 s{tmp+3}, s{tmp}, {QKV_T}")
    a(f"s_add_u32 s{tmp+1}, s{tmp+1}, s{tmp+3}")
    if WS_QKV: a(f"s_add_u32 s{tmp+1}, s{tmp+1}, {WS_QKV}")
    a(f"v_add_u32 v{C.VQA}, s{tmp+1}, v{T+5}")
    nonce_fin(a)
    kloop(a, cons, "a", 10, reads(0), mfmas(C.ACC))
    cs_write(0)
    cons.bar("a.E")
    RSv = C.RSV
    def cs_table(off, dst, blocks):
        a(f"v_lshlrev_b32 v{T+2}, 4, v{VQ}")
        a(f"s_lshl_b32 s{tmp}, s{w+1}, 7")
        a(f"s_add_u32 s{tmp}, s{tmp}, {L_CS+off}")
        a(f"v_add_u32 v{T+2}, s{tmp}, v{T+2}")
        for i, d in zip(blocks, dst):
            a(f"ds_read_b128 v[{d}:{d+3}], v{T+2} offset:{(i//2)*256 + (i%2)*64}")
    def lnfold(acc, cs, ta, E):
        for h in range(2):
            a(f"v_pk_mul_f32 v[{E+2*h}:{E+2*h+1}], v[{cs+2*h}:{cs+2*h+1}], v[{RSv+2*ta}:{RSv+2*ta+1}] op_sel:[0,1] op_sel_hi:[1,1]")
        for h in range(2):
            a(f"v_pk_fma_f32 v[{acc+2*h}:{acc+2*h+1}], v[{acc+2*h}:{acc+2*h+1}], v[{RSv+2*ta}:{RSv+2*ta+1}], v[{E+2*h}:{E+2*h+1}] op_sel:[0,0,0] op_sel_hi:[1,0,1]")
    def pack_pair(acc0, acc1, pk):
        for bi, acc in enumerate((acc0, acc1)):
            a(f"v_cvt_pk_bf16_f32 v{pk+2*bi}, v{acc}, v{acc+1}")
            a(f"v_cvt_pk_bf16_f32 v{pk+2*bi+1}, v{acc+2}, v{acc+3}")
        a("s_nop 1")
        a(f"v_permlane16_swap_b32 v{pk}, v{pk+2}")
        a(f"v_permlane16_swap_b32 v{pk+1}, v{pk+3}")
    CSv = 64
    PK = 80
    S12 = 84
    E = 92
    KK, ONE2, ONES = 100, 102, 104
    ACC = C.ACC
    a(f"s_lshl_b32 s{tmp}, s{w}, 6")
    a(f"v_add_u32 v{T}, s{tmp}, v{VT15}")
    a(f"v_lshlrev_b32 v{T+1}, 3, v{T}")
    a(f"v_add_u32 v{T+1}, {L_RS}, v{T+1}")
    for ta in range(4):
        a(f"ds_read_b64 v[{RSv+2*ta}:{RSv+2*ta+1}], v{T+1} offset:{ta*128}")
    cs_table(0, [CSv, CSv+4, C.CSZ, C.CSZ+4], range(4))
    a(f"v_mov_b32 v{KK}, {f32hex(GELU_K1)}")
    a(f"v_mov_b32 v{KK+1}, {f32hex(GELU_K0)}")
    a(f"v_mov_b32 v{ONE2}, 1.0")
    a(f"v_mov_b32 v{ONE2+1}, 1.0")
    a(f"v_mov_b32 v{ONES}, 0x3f803f80")
    for r in range(8): a(f"v_mov_b32 v{S12+r}, 0")
    VGA = T + 3
    a(f"v_lshrrev_b32 v{T+6}, 3, v{VT15}")
    a(f"v_lshlrev_b32 v{T+6}, 2, v{T+6}")
    a(f"v_and_b32 v{T+7}, 7, v{VT15}")
    a(f"v_xor_b32 v{T+6}, v{T+6}, v{T+7}")
    a(f"s_lshl_b32 s{tmp}, s{w+1}, 2")
    a(f"v_or_b32 v{T+5}, s{tmp}, v{C.VCQ}")
    a(f"v_xor_b32 v{T+6}, v{T+6}, v{T+5}")
    a(f"v_lshlrev_b32 v{T+6}, 4, v{T+6}")
    a(f"v_lshl_add_u32 v{VGA}, v{T}, 7, v{T+6}")
    a(f"v_add_u32 v{VGA}, {L_GB}, v{VGA}")
    a(f"s_cmp_lt_u32 s{S_J}, 13")
    a(f"s_cselect_b32 s{tmp}, {hex(WS_BYTES)}, 0")
    mk_srd(a, SRD_M, P_WS, f"s{tmp}")
    a("s_waitcnt lgkmcnt(0)")
    lz, ln = a.lab("La_z"), a.lab("La_n")
    for ta in range(4):
        for i in range(2): lnfold(ACC + (ta*4+i)*4, CSv + 4*i, ta, E)
    a(f"s_add_u32 s{tmp}, s{S_J}, s{w+1}")
    a(f"s_cmp_lg_u32 s{tmp}, 0")
    a(f"s_cbranch_scc1 {lz}")
    a(f"v_add_u32 v{E+4}, {104*256}, v{C.VZ1}")
    for ta in range(4):
        pk = 64 + 4*ta + 8
        pack_pair(ACC + ta*16, ACC + ta*16 + 4, pk)
        a(f"s_mov_b32 s{tmp}, {ta*Z1_T}")
        a(f"buffer_store_dwordx4 v[{pk}:{pk+3}], v{E+4}, s[{SRD_M}:{SRD_M+3}], s{tmp} offen {psc}")
    for r in range(8): a(f"v_mov_b32 v{S12+r}, 0")
    a(f"s_branch {ln}")
    a(f"{lz}:")
    for ta in range(4):
        for bi in range(2):
            acc = ACC + (ta*4+bi)*4; p = PK + 2*bi
            for h in range(2):
                a(f"v_pk_mul_f32 v[{E+2*h}:{E+2*h+1}], v[{acc+2*h}:{acc+2*h+1}], v[{acc+2*h}:{acc+2*h+1}]")
            for h in range(2):
                a(f"v_pk_fma_f32 v[{E+2*h}:{E+2*h+1}], v[{E+2*h}:{E+2*h+1}], v[{KK}:{KK+1}], v[{KK}:{KK+1}] op_sel:[0,0,1] op_sel_hi:[1,0,1]")
            for h in range(2):
                a(f"v_pk_mul_f32 v[{E+2*h}:{E+2*h+1}], v[{E+2*h}:{E+2*h+1}], v[{acc+2*h}:{acc+2*h+1}]")
            for r in range(4): a(f"v_exp_f32 v{E+r}, v{E+r}")
            a("s_nop 0")
            for h in range(2):
                a(f"v_pk_add_f32 v[{E+2*h}:{E+2*h+1}], v[{E+2*h}:{E+2*h+1}], v[{ONE2}:{ONE2+1}]")
            for r in range(4): a(f"v_rcp_f32 v{E+r}, v{E+r}")
            a("s_nop 0")
            for h in range(2):
                a(f"v_pk_mul_f32 v[{E+2*h}:{E+2*h+1}], v[{E+2*h}:{E+2*h+1}], v[{acc+2*h}:{acc+2*h+1}]")
            a(f"v_cvt_pk_bf16_f32 v{p}, v{E}, v{E+1}")
            a(f"v_cvt_pk_bf16_f32 v{p+1}, v{E+2}, v{E+3}")
        for p in range(PK, PK+4):
            a(f"v_dot2c_f32_bf16 v{S12+2*ta}, v{p}, v{ONES}")
            a(f"v_dot2c_f32_bf16 v{S12+2*ta+1}, v{p}, v{p}")
        a(f"v_permlane16_swap_b32 v{PK}, v{PK+2}")
        a(f"v_permlane16_swap_b32 v{PK+1}, v{PK+3}")
        a(f"ds_write_b128 v{VGA}, v[{PK}:{PK+3}] offset:{ta*2048}")
    a(f"{ln}:")
    a("s_nop 2")
    red_q(a, list(range(S12, S12+8)), list(range(E, E+8)))
    a(f"v_lshlrev_b32 v{T+1}, 3, v{T}")
    a(f"s_lshl_b32 s{tmp}, s{w+1}, 10")
    a(f"s_add_u32 s{tmp}, s{tmp}, {L_ST}")
    a(f"v_add_u32 v{T+1}, s{tmp}, v{T+1}")
    for ta in range(4):
        a(f"ds_write_b64 v{T+1}, v[{S12+2*ta}:{S12+2*ta+1}] offset:{ta*128}")
    a("s_waitcnt lgkmcnt(0)")
    S_ZT = S_A + 2
    def z1_job(ta):
        L = []; pk = ACC + ta*16; tm = pk + 4
        for bi in range(2):
            acc = ACC + (ta*4+2+bi)*4; cs = C.CSZ + 4*bi
            for r in range(4): L.append(f"v_mul_f32 v{tm+r}, v{cs+r}, v{RSv+2*ta+1}")
            for r in range(4): L.append(f"v_fma_f32 v{acc+r}, v{acc+r}, v{RSv+2*ta}, v{tm+r}")
        for bi in range(2):
            acc = ACC + (ta*4+2+bi)*4
            L.append(f"v_cvt_pk_bf16_f32 v{pk+2*bi}, v{acc}, v{acc+1}")
            L.append(f"v_cvt_pk_bf16_f32 v{pk+2*bi+1}, v{acc+2}, v{acc+3}")
        L.append(f"s_mov_b32 s{S_ZT}, {ta*Z1_T}")
        L.append(f"v_permlane16_swap_b32 v{pk}, v{pk+2}")
        L.append(f"v_permlane16_swap_b32 v{pk+1}, v{pk+3}")
        def st():
            a(f"buffer_store_dwordx4 v[{pk}:{pk+3}], v{C.VZ1}, s[{SRD_M}:{SRD_M+3}], s{S_ZT} offen {psc}"); cons.issue("z1")
        L.append(st)
        return L
    ZJ = [int(x) for x in os.environ.get("ZJ", "1,2,3,4").split(",")]
    def extra_b(t, step):
        if t in ZJ:
            L = z1_job(ZJ.index(t)); h = len(L)//2
            return L[:h] if step == 0 else L[h:]
        if in_b and t == 6 and step == 0: return [in_b]
        return []
    kloop(a, cons, "b", 10, reads(10), mfmas(C.ACCB), extra=extra_b)
    cs_write(512)
    cons.bar("b.E")
    if post_bE: post_bE()
    CSv, E, PK = 96, 112, 116
    cs_table(512, [CSv + 4*i for i in range(4)], range(4))
    a(f"s_cmp_lt_u32 s{S_J}, 15")
    a(f"s_cselect_b32 s{tmp}, {hex(WS_BYTES)}, 0")
    mk_srd(a, SRD_M, P_WS, f"s{tmp}")
    a("s_waitcnt lgkmcnt(0)")
    for ta in range(4):
        a(f"s_mov_b32 s{tmp}, {ta*QKV_T}")
        for pr in range(2):
            a0 = C.ACCB + (ta*4+2*pr)*4
            lnfold(a0, CSv + 8*pr, ta, E); lnfold(a0 + 4, CSv + 8*pr + 4, ta, E)
            pk = PK + 4*pr
            pack_pair(a0, a0 + 4, pk)
            a(f"buffer_store_dwordx4 v[{pk}:{pk+3}], v{C.VQA}, s[{SRD_M}:{SRD_M+3}], s{tmp} offen offset:{pr*2048} {psc}"); cons.issue("qkv")
```

```python
from fw import *
from p1 import red_q, C1, flag_poll_ld
import os
E_ = os.environ.get

P2_R, P2_SLOT, P2_NT = 5, 16384, 16
P2_D = int(E_("P2_D", "12"))
L_AT = 81920
L_Q, L_KV = L_AT, L_AT + 10240

def flag_poll(a, role, vaddr, vland, srd, lab):
    def ld(): flag_poll_ld(a, vaddr, vland, srd)
    ld(); role.issue("poll")
    role.wait("poll")
    poll_loop(a, ld, lambda: a(f"v_cmp_ne_u32 vcc, s{S_NONCE}, v{vland}"), lab)

class D2:
    VX = 30
    S_MX = S_A+8

def p2_dma(D):
    a = D.a; w = f"s{S_LW}"; R = D2; T = 80
    def setup():
        mk_srd(a, SRD_X, P_WSP, 2048*4096)
        a(f"v_lshrrev_b32 v{T}, 3, v{VLANE}")
        a(f"v_lshrrev_b32 v{T+1}, 4, v{VLANE}")
        a(f"s_lshl_b32 s{T0}, {w}, 2")
        a(f"v_add_u32 v{T+1}, s{T0}, v{T+1}")
        a(f"v_and_b32 v{T+2}, 7, v{VLANE}")
        a(f"v_xor_b32 v{T+1}, v{T+1}, v{T+2}")
        a(f"s_lshl_b32 s{T0}, s{S_TB}, 6")
        a(f"s_lshl_b32 s{T0+1}, {w}, 3")
        a(f"s_add_u32 s{T0}, s{T0}, s{T0+1}")
        a(f"v_add_u32 v{T}, s{T0}, v{T}")
        a(f"v_lshlrev_b32 v{T}, 12, v{T}")
        a(f"v_lshl_add_u32 v{R.VX}, v{T+1}, 4, v{T}")
        a(f"s_lshl_b32 s{R.S_MX}, {w}, 10")
    def mk(t):
        def f():
            if t == 0: setup()
            base = (t % P2_R)*P2_SLOT
            for hh in range(2):
                for k in range(4):
                    a(f"s_add_u32 m0, s{R.S_MX}, {base + hh*8192 + k*2048}")
                    a(f"s_mov_b32 s{T0}, {t*256 + hh*128 + k*16*4096}")
                    a(f"buffer_load_dwordx4 v{R.VX}, s[{SRD_X}:{SRD_X+3}], s{T0} offen lds"); D.issue(("c", t))
        return f
    for t in range(P2_NT):
        lo = (t % P2_R)*P2_SLOT
        D.slices.append(Slice(("c", t), lo, lo + P2_SLOT, mk(t)))
    for t in range(P2_NT):
        D.bars.append((f"c.t{t}", ("c", t), [("c", t-1)] if t else []))

class C2:
    WR = 0
    Z1 = 96
    TM = 112
    AX = 136
    ACC, XF = 144, 176
    G = 208
    BS = 220
    KK = 240
    VW0, VW1, VZ, VH = 242, 243, 244, 245
    S_WOFF = S_A + 3

def p2_pre(a, cons):
    C = C2; tmp = T0; T = C1.T
    def bias_loads():
        mk_srd(a, SRD_M, P_BSP, 4096)
        a(f"s_lshl_b32 s{tmp}, s{S_TB}, 7")
        a(f"v_lshl_add_u32 v{T}, v{C1.VT15}, 1, s{tmp}")
        for ta in range(4):
            a(f"buffer_load_ushort v{C.BS+ta}, v{T}, s[{SRD_M}:{SRD_M+3}], 0 offen offset:{32*ta}"); cons.issue("bs")
    def w_first():
        a(f"s_mul_i32 s{tmp}, s{S_FB}, 7")
        a(f"s_lshl_b32 s{tmp+1}, s{S_WAVE}, 1")
        a(f"s_add_u32 s{tmp}, s{tmp}, s{tmp+1}")
        a(f"v_lshlrev_b32 v{T}, 4, v{VLANE}")
        for b in range(2):
            a(f"s_add_u32 s{tmp+2}, s{tmp}, {b}")
            a(f"s_lshl_b32 s{tmp+3}, s{tmp+2}, 16")
            a(f"s_add_u32 s{tmp+3}, s{tmp+3}, {WS_Z2N}")
            a(f"s_cmp_lt_u32 s{tmp+2}, 54")
            a(f"s_cselect_b32 s{tmp+3}, s{tmp+3}, {hex(OOB)}")
            if b == 1:
                a(f"s_cmp_eq_u32 s{S_WAVE}, 3")
                a(f"s_cselect_b32 s{tmp+3}, {hex(OOB)}, s{tmp+3}")
            a(f"v_add_u32 v{C.VW0+b}, s{tmp+3}, v{T}")
        for s in range(P2_D): w_load(a, cons, s)
    return bias_loads, w_first

def w_load(a, cons, s, blocks=(0, 1)):
    C = C2
    for b in blocks:
        if s % 4 == 0 and b == 0: a(f"s_mov_b32 s{C.S_WOFF}, {(s//4)*4096}")
        d = C.WR + (s % P2_D)*8 + 4*b
        a(f"buffer_load_dwordx4 v[{d}:{d+3}], v{C.VW0+b}, s[{SRD_WS}:{SRD_WS+3}], s{C.S_WOFF} offen offset:{(s%4)*1024} sc1"); cons.issue(("W", s))

def p2_consumer(a, cons, rx=None, tail=None, after=None):
    C = C2; ACC, XF, AX, TM = C.ACC, C.XF, C.AX, C.TM
    tmp = T0
    VT15, VQ = C1.VT15, C1.VQ
    tail = tail or (lambda s: []); rx = rx or (lambda s: [])
    cons.wait("bs")
    for ta in range(4): a(f"v_lshlrev_b32 v{C.BS+ta}, 16, v{C.BS+ta}")
    for ta in range(4):
        for r in range(8): a(f"v_mov_b32 v{ACC+8*ta+r}, v{C.BS+ta}")
    a(f"v_lshrrev_b32 v{TM+2}, 1, v{VT15}")
    a(f"v_xor_b32 v{TM+2}, v{TM+2}, v{VQ}")
    a(f"v_lshlrev_b32 v{TM+3}, 7, v{VT15}")
    a(f"v_lshl_add_u32 v{AX}, v{TM+2}, 4, v{TM+3}")
    a(f"v_xor_b32 v{AX+1}, 64, v{AX}")
    a(f"v_add_u32 v{AX+2}, {4*P2_SLOT}, v{AX}")
    a(f"v_add_u32 v{AX+3}, {4*P2_SLOT}, v{AX+1}")
    a(f"v_lshlrev_b32 v{TM+4}, 8, v{C1.VCQ}")
    a(f"v_lshl_add_u32 v{TM+4}, v{VT15}, 4, v{TM+4}")
    a(f"s_lshl_b32 s{tmp}, s{S_TB}, 2")
    a(f"s_mul_i32 s{tmp}, s{tmp}, {Z1_T}")
    a(f"s_mul_i32 s{tmp+1}, s{S_FB}, 14")
    a(f"s_lshl_b32 s{tmp+2}, s{S_WAVE}, 2")
    a(f"s_add_u32 s{tmp+1}, s{tmp+1}, s{tmp+2}")
    a(f"s_lshl_b32 s{tmp+3}, s{tmp+1}, 8")
    a(f"s_add_u32 s{tmp}, s{tmp}, s{tmp+3}")
    a(f"v_add_u32 v{TM+4}, s{tmp}, v{TM+4}")
    a(f"v_add_u32 v{TM+5}, s{tmp+2}, v{C1.VCQ}")
    a(f"v_add_u32 v{TM+6}, s{tmp+1}, v{C1.VCQ}")
    a(f"v_cmp_gt_u32 vcc, 14, v{TM+5}")
    a(f"v_mov_b32 v{TM+7}, {hex(OOB)}")
    a(f"v_cndmask_b32 v{TM+4}, v{TM+7}, v{TM+4}, vcc")
    a(f"v_cmp_gt_u32 vcc, 108, v{TM+6}")
    a("s_nop 0")
    a(f"v_cndmask_b32 v{TM+4}, v{TM+7}, v{TM+4}, vcc")
    a(f"v_add_u32 v{C.VZ}, {WS_Z1}, v{TM+4}")
    a(f"v_add_u32 v{C.VH}, {WS_H}, v{TM+4}")
    a(f"v_mov_b32 v{C.KK}, {f32hex(GELU_K1)}")
    a(f"v_mov_b32 v{C.KK+1}, {f32hex(GELU_K0)}")
    def reads(s):
        t, hh, st = s//4, (s//2) % 2, s % 2
        slot = t % P2_R; r0 = AX + (2 if slot == 4 else 0) + st; so = (0 if slot == 4 else slot*P2_SLOT) + hh*8192
        d = XF + (s % 2)*16
        return [f"ds_read_b128 v[{d+4*ta}:{d+4*ta+3}], v{r0} offset:{so + ta*2048}" for ta in range(4)]
    def mfma(s, ta, b):
        acc = ACC + ta*8 + b*4; wr = C.WR + (s % P2_D)*8 + 4*b; x = XF + (s % 2)*16 + 4*ta
        return f"v_mfma_f32_16x16x32_bf16 v[{acc}:{acc+3}], v[{wr}:{wr+3}], v[{x}:{x+3}], v[{acc}:{acc+3}]"
    S_Z = S_A + 4
    def z1_loads():
        for ta in range(4):
            a(f"s_mov_b32 s{S_Z}, {ta*Z1_T}")
            z = C.Z1 + 4*ta
            a(f"buffer_load_dwordx4 v[{z}:{z+3}], v{C.VZ}, s[{SRD_WS}:{SRD_WS+3}], s{S_Z} offen sc1"); cons.issue("z1l")
    def gelu2(k):
        ta, p = k//4, k % 4
        z = C.Z1 + 4*ta + p; g = C.G + 8*ta + 2*p; t = TM + 2*(k % 2)
        L = [f"v_lshlrev_b32 v{g}, 16, v{z}", f"v_and_b32 v{g+1}, 0xffff0000, v{z}"]
        for e in range(2): L.append(f"v_mul_f32 v{t+e}, v{g+e}, v{g+e}")
        for e in range(2): L.append(f"v_fma_f32 v{t+e}, v{t+e}, v{C.KK}, v{C.KK+1}")
        for e in range(2): L.append(f"v_mul_f32 v{t+e}, v{t+e}, v{g+e}")
        for e in range(2): L.append(f"v_exp_f32 v{t+e}, v{t+e}")
        for e in range(2): L.append(f"v_add_f32 v{t+e}, 1.0, v{t+e}")
        for e in range(2): L.append(f"v_rcp_f32 v{t+e}, v{t+e}")
        for e in range(2): L.append(f"v_mul_f32 v{g+e}, v{g+e}, v{t+e}")
        return L
    T_ZL = int(E_("T_ZL", "4")); S_G0 = int(E_("S_G0", "28")); T_PW = int(E_("T_PW", "2"))
    cons.bar("c.t0")
    for x in reads(0): a(x)
    NS = 4*P2_NT
    for s in range(NS):
        a("s_waitcnt lgkmcnt(0)")
        if s % 4 == 3:
            t1 = s//4 + 1
            if t1 == T_PW: cons.wait(["z1", "qkv"])
            cons.bar(f"c.t{t1}" if t1 < P2_NT else "c.E")
            if t1 == T_ZL: z1_loads()
        if s == S_G0: cons.wait("z1l")
        cons.wait(("W", s))
        m = [mfma(s, ta, b) for b in range(2) for ta in range(4)]
        r = (reads(s+1) if s + 1 < NS else []) + rx(s)
        e = gelu2(s - S_G0) if S_G0 <= s < S_G0 + 16 else []
        seq = interleave3(m, r, e)
        out = []; seen = 0
        for x in seq:
            out.append(x)
            if x in m:
                seen += 1
                if s + P2_D < NS and seen in (4, 8):
                    out.append(lambda b=(0 if seen == 4 else 1): w_load(a, cons, s + P2_D, blocks=(b,)))
        out += tail(s)
        for x in out:
            if callable(x): x()
            else: a(x)
    for ta in range(4):
        a0 = ACC + ta*8; a1 = a0 + 4; g = C.G + 8*ta; pk = (132, 140)[ta % 2]
        for r in range(4): a(f"v_permlane16_swap_b32 v{a0+r}, v{a1+r}")
        for h in range(4):
            a(f"v_pk_mul_f32 v[{a0+2*h}:{a0+2*h+1}], v[{a0+2*h}:{a0+2*h+1}], v[{g+2*h}:{g+2*h+1}]")
        for p in range(4):
            a(f"v_cvt_pk_bf16_f32 v{pk+p}, v{a0+2*p}, v{a0+2*p+1}")
        a(f"s_mov_b32 s{S_Z}, {ta*H_T}")
        a(f"buffer_store_dwordx4 v[{pk}:{pk+3}], v{C.VH}, s[{SRD_WS}:{SRD_WS+3}], s{S_Z} offen sc1"); cons.issue("h")
    if after: after()

class A2:
    VL, VMQ, VMK = 10, 11, 12
    AQ, AK, AV, AO, AO1 = 14, 16, 18, 20, 22
    BI = 24
    ONE = 36
    MQ0, MQ1 = 40, 41
    CS = 42
    U = 50
    T = 140
    VF, VT = 152, 153
    VFW, FW = 154, 156

def cost(x):
    op = x.split()[0]
    if op.startswith("v_mfma"): return 16
    if op in ("v_exp_f32", "v_rcp_f32"): return 10
    if op.startswith("v_"): return 6
    if op.startswith("ds_read"): return 8
    if op.startswith("ds_write"): return 12
    if op == "s_nop": return 4*(int(x.split()[1]) + 1)
    if op == "s_waitcnt": return 60
    return 2

def p2_side(Sd):
    a = Sd.a; R = A2; T = R.T; sw = f"s{S_LW}"
    def fp_addr():
        a(f"s_lshl_b32 s{T0}, s{S_M}, 7")
        a(f"s_lshl_b32 s{T0+1}, s{S_J}, 2")
        a(f"s_add_u32 s{T0}, s{T0}, s{T0+1}")
        a(f"s_add_u32 s{T0}, s{T0}, {F_P}")
    def setup():
        a(f"s_lshr_b32 s{T0}, s{S_TB}, 1")
        a(f"s_and_b32 s{T0+1}, s{S_TB}, 1")
        a(f"s_xor_b32 s{T0+1}, s{T0+1}, 1")
        a(f"s_sub_u32 s{T0+1}, s{T0}, s{T0+1}")
        a(f"s_max_i32 s{T0+1}, s{T0+1}, 0")
        a(f"v_bfe_u32 v{T}, v{VLANE}, 4, 1")
        a(f"v_cmp_eq_u32 vcc, 1, v{T}")
        a(f"v_mov_b32 v{T+1}, s{T0}")
        a(f"v_mov_b32 v{T+2}, s{T0+1}")
        a(f"v_cndmask_b32 v{T+1}, v{T+1}, v{T+2}, vcc")
        a(f"v_lshlrev_b32 v{T+1}, 7, v{T+1}")
        a(f"v_and_b32 v{T+2}, 15, v{VLANE}")
        a(f"v_lshl_add_u32 v{T+1}, v{T+2}, 2, v{T+1}")
        a(f"v_add_u32 v{R.VF}, {F_P}, v{T+1}")
        a(f"v_lshlrev_b32 v{R.VL}, 4, v{VLANE}")
        a(f"v_cmp_gt_u32 vcc, 32, v{VLANE}")
        a(f"v_add_u32 v{T}, 2048, v{R.VL}")
        for v, stride in ((R.VMQ, QKV_T), (R.VMK, 80*256)):
            a(f"v_add_u32 v{T+1}, {stride - 512}, v{R.VL}")
            a(f"v_cndmask_b32 v{v}, v{T+1}, v{T}, vcc")
        I, Q = T+8, T+9
        a(f"v_and_b32 v{I}, 15, v{VLANE}")
        a(f"v_lshrrev_b32 v{Q}, 4, v{VLANE}")
        a(f"v_lshlrev_b32 v{T+10}, 4, v{I}")
        a(f"v_cmp_gt_u32 vcc, 3, v{Q}")
        a(f"v_cndmask_b32 v{R.MQ0}, 0, -1, vcc")
        a(f"v_cmp_gt_u32 vcc, 2, v{Q}")
        a(f"v_cndmask_b32 v{R.MQ1}, 0, -1, vcc")
        a(f"v_min_u32 v{T}, 2, v{Q}")
        a(f"v_add_u32 v{T+1}, 1, v{Q}")
        a(f"v_and_b32 v{T+1}, v{R.MQ1}, v{T+1}")
        a(f"s_mul_i32 s{T0}, {sw}, 5120")
        a(f"s_add_u32 s{T0}, s{T0}, {L_Q}")
        a(f"s_mul_i32 s{T0+1}, {sw}, 10240")
        a(f"s_add_u32 s{T0+1}, s{T0+1}, {L_KV}")
        for k in range(2):
            a(f"v_lshl_add_u32 v{T+2}, v{T+k}, 8, v{T+10}")
            a(f"v_add_u32 v{R.AQ+k}, s{T0}, v{T+2}")
            a(f"v_add_u32 v{R.AK+k}, s{T0+1}, v{T+2}")
        a(f"v_lshrrev_b32 v{T}, 2, v{I}")
        a(f"v_lshl_add_u32 v{T}, v{Q}, 2, v{T}")
        a(f"v_lshlrev_b32 v{T}, 4, v{T}")
        a(f"v_and_b32 v{T+1}, 3, v{I}")
        a(f"s_add_u32 s{T0+2}, s{T0+1}, 2560")
        for k in range(2):
            a(f"v_add_u32 v{T+2}, {k}, v{T+1}")
            a(f"v_lshrrev_b32 v{T+3}, 1, v{T+2}")
            a(f"v_and_b32 v{T+2}, 1, v{T+2}")
            a(f"v_lshl_add_u32 v{T+3}, v{T+3}, 8, v{T}")
            a(f"v_lshl_add_u32 v{T+3}, v{T+2}, 3, v{T+3}")
            a(f"v_add_u32 v{R.AV+k}, s{T0+2}, v{T+3}")
        for k in range(2):
            a(f"v_add_u32 v{T+2}, {k}, v{Q}")
            a(f"v_lshrrev_b32 v{T+3}, 1, v{T+2}")
            a(f"v_and_b32 v{T+2}, 1, v{T+2}")
            a(f"v_lshl_add_u32 v{T+3}, v{T+3}, 8, v{T+10}")
            a(f"v_lshl_add_u32 v{T+3}, v{T+2}, 3, v{T+3}")
            a(f"v_add_u32 v{R.AO+k}, s{T0}, v{T+3}")
            a(f"v_add_u32 v{T+3}, {512 + 8*k}, v{T+10}")
            a(f"v_add_u32 v{R.AO1+k}, s{T0}, v{T+3}")
        a(f"v_lshlrev_b32 v{T+4}, 2, v{Q}")
        a(f"v_sub_u32 v{T+4}, v{I}, v{T+4}")
        a(f"v_mov_b32 v{T+6}, {f32hex(-1e9)}")
        for blk in range(2):
            for r in range(4):
                a(f"v_add_u32 v{T+5}, {16 - 16*blk - r}, v{T+4}")
                a(f"v_and_b32 v{T+7}, 0xfffffff1, v{T+5}")
                a(f"v_cmp_eq_u32 vcc, 0, v{T+7}")
                a("s_nop 0")
                a(f"v_cndmask_b32 v{R.BI+4*blk+r}, v{T+6}, 0, vcc")
        a(f"s_or_b32 s{T0}, s{S_TB}, {sw}")
        a(f"s_cmp_eq_u32 s{T0}, 0")
        a(f"s_cselect_b64 vcc, -1, 0")
        for r in range(4): a(f"v_cndmask_b32 v{R.BI+8+r}, v{R.BI+r}, v{T+6}, vcc")
        for r in range(4): a(f"v_mov_b32 v{R.ONE+r}, 0x3f803f80")
        a(f"v_mov_b32 v{R.CS}, {f32hex(20**-0.5*LOG2E)}")
    def poll_fp():
        flag_poll(a, Sd, R.VF, R.VT, SRD_WS, "Lfp")
    def fw_ld(): a(f"buffer_load_dwordx4 v[{R.FW}:{R.FW+3}], v{R.VFW}, s[{SRD_WS}:{SRD_WS+3}], 0 offen sc1")
    def fw_issue():
        a(f"v_lshlrev_b32 v{R.VFW}, 4, v{VLANE}")
        a(f"v_add_u32 v{R.VFW}, {F_W}, v{R.VFW}")
        fw_ld(); Sd.issue("fwp")
    def fw_check():
        Sd.wait("fwp")
        def chk():
            a(f"v_xor_b32 v{T}, s{S_NONCE}, v{R.FW}")
            for r in range(1, 4):
                a(f"v_xor_b32 v{T+1}, s{S_NONCE}, v{R.FW+r}")
                a(f"v_or_b32 v{T}, v{T}, v{T+1}")
            a(f"v_cmp_ne_u32 vcc, 0, v{T}")
        poll_loop(a, fw_ld, chk, "Lfw")
    def ref_addr():
        a(f"s_mov_b32 s{T0+1}, {F_REF}")
        a(f"s_cmp_eq_u32 s{S_WG}, 0")
        a(f"s_cselect_b32 s{T0}, s{T0+1}, {hex(OOB)}")
    def pair_load(vmix, stride, sbase, lds, oob):
        for i in range(5):
            a(f"s_add_u32 m0, s{lds}, {1024*i}")
            off = [0, 1024, 0, stride + 512, stride + 1536][i]
            a(f"s_add_u32 s{T0}, s{sbase}, {off}")
            v = vmix if i == 2 else R.VL
            if oob is not None:
                a(f"v_or_b32 v{T}, s{oob}, v{v}"); v = T
            a(f"buffer_load_dwordx4 v{v}, s[{SRD_WS}:{SRD_WS+3}], s{T0} offen sc1 lds"); Sd.issue("stg")
    def stage():
        S0, S1, S2, S3 = S_A+2, S_A+3, S_A+4, S_A+5
        a(f"s_lshl_b32 s{S0}, s{S_TB}, 2")
        a(f"s_lshl_b32 s{T0}, {sw}, 1")
        a(f"s_add_u32 s{S0}, s{S0}, s{T0}")
        a(f"s_mul_i32 s{S0}, s{S0}, {QKV_T}")
        a(f"s_mul_i32 s{S1}, s{S_FB}, 2560")
        a(f"s_add_u32 s{S0}, s{S0}, s{S1}")
        if WS_QKV: a(f"s_add_u32 s{S0}, s{S0}, {WS_QKV}")
        a(f"s_mul_i32 s{S2}, {sw}, 5120")
        a(f"s_add_u32 s{S2}, s{S2}, {L_Q}")
        pair_load(R.VMQ, QKV_T, S0, S2, None)
        for k in range(3):
            a(f"s_lshl_b32 s{S0}, s{S_TB}, 2")
            a(f"s_add_u32 s{S0}, s{S0}, {sw}")
            a(f"s_add_u32 s{S0}, s{S0}, {2*k}")
            oob = None
            if k == 0:
                a(f"s_cmp_eq_u32 s{S0}, 0")
                a(f"s_cselect_b32 s{S3}, {hex(OOB)}, 0")
                a(f"s_max_u32 s{S0}, s{S0}, 1"); oob = S3
            if k == 2:
                a(f"s_cmp_eq_u32 {sw}, 1")
                a(f"s_cselect_b32 s{S3}, {hex(OOB)}, 0")
                a(f"s_sub_u32 s{S0}, s{S0}, {sw}"); oob = S3
            a(f"s_sub_u32 s{S0}, s{S0}, 1")
            a(f"s_mul_i32 s{S0}, s{S0}, {QKV_T}")
            a(f"s_add_u32 s{S0}, s{S0}, s{S1}")
            a(f"s_add_u32 s{S0}, s{S0}, {WS_QKV + 80*256}")
            a(f"s_mul_i32 s{S2}, {sw}, 5120")
            a(f"s_add_u32 s{S2}, s{S2}, {L_KV + k*10240}")
            pair_load(R.VMK, 80*256, S0, S2, oob)
    def regs(s):
        b = R.U + 44*s
        return dict(Q=b, K0=b+4, K1=b+8, V0=b+12, V1=b+16, S=b+20, P=b+28, O0=b+32, O1=b+36, SM=b+40)
    U0 = [0, 2, 5, 7]
    def stA(L, g, h0):
        for s in range(2):
            u = regs(s); h = h0 + s; o = U0[h]*256
            L.append(f"ds_read_b128 v[{u['Q']}:{u['Q']+3}], v{R.AQ+(h&1)} offset:{g*2560 + o}")
            L.append(f"ds_read_b128 v[{u['K0']}:{u['K0']+3}], v{R.AK+(h&1)} offset:{g*5120 + o}")
            L.append(f"ds_read_b128 v[{u['K1']}:{u['K1']+3}], v{R.AK+(h&1)} offset:{(g+1)*5120 + o}")
        for s in range(2):
            u = regs(s); h = h0 + s
            for db in range(2):
                d = u['V0'] + 4*db; o = g*5120 + U0[h]*256 + 512*db
                L.append(f"ds_read_b64_tr_b16 v[{d}:{d+1}], v{R.AV+(h&1)} offset:{o}")
                L.append(f"ds_read_b64_tr_b16 v[{d+2}:{d+3}], v{R.AV+(h&1)} offset:{o + 5120}")
        for s in range(2):
            u = regs(s); h = h0 + s
            L.append(f"s_waitcnt lgkmcnt({8 + 3*(1-s)})")
            m01, m23 = (R.MQ0, R.MQ1) if h % 2 == 0 else (R.MQ1, R.MQ0)
            for r in range(2): L.append(f"v_and_b32 v{u['Q']+r}, v{m01}, v{u['Q']+r}")
            for r in range(2, 4): L.append(f"v_and_b32 v{u['Q']+r}, v{m23}, v{u['Q']+r}")
            L.append("s_nop 1")
            b0 = R.BI + 8 if g == 0 else R.BI
            L.append(f"v_mfma_f32_16x16x32_bf16 v[{u['S']}:{u['S']+3}], v[{u['K0']}:{u['K0']+3}], v[{u['Q']}:{u['Q']+3}], v[{b0}:{b0+3}]")
            L.append(f"v_mfma_f32_16x16x32_bf16 v[{u['S']+4}:{u['S']+7}], v[{u['K1']}:{u['K1']+3}], v[{u['Q']}:{u['Q']+3}], v[{R.BI+4}:{R.BI+7}]")
    def stB(L):
        L.append("s_nop 7")
        M = T
        for s in range(2):
            S = regs(s)['S']; m = M + 4*s
            L.append(f"v_max3_f32 v{m}, v{S}, v{S+1}, v{S+2}")
            L.append(f"v_max3_f32 v{m+1}, v{S+3}, v{S+4}, v{S+5}")
            L.append(f"v_max3_f32 v{m}, v{S+6}, v{S+7}, v{m}")
            L.append(f"v_max_f32 v{m}, v{m}, v{m+1}")
        for op in ("v_permlane32_swap_b32", "v_permlane16_swap_b32"):
            for s in range(2): L.append(f"v_mov_b32 v{M+4*s+1}, v{M+4*s}")
            L.append("s_nop 1")
            for s in range(2): L.append(f"{op} v{M+4*s}, v{M+4*s+1}")
            L.append("s_nop 0")
            for s in range(2): L.append(f"v_max_f32 v{M+4*s}, v{M+4*s}, v{M+4*s+1}")
        for s in range(2): L.append(f"v_mul_f32 v{M+4*s}, v{M+4*s}, v{R.CS}")
        for s in range(2):
            S = regs(s)['S']
            for r in range(8): L.append(f"v_fma_f32 v{S+r}, v{S+r}, v{R.CS}, -v{M+4*s}")
    def stC(L):
        for s in range(2):
            u = regs(s); S = u['S']
            for r in range(8): L.append(f"v_exp_f32 v{S+r}, v{S+r}")
        for s in range(2):
            u = regs(s); S = u['S']
            for p in range(4): L.append(f"v_cvt_pk_bf16_f32 v{u['P']+p}, v{S+2*p}, v{S+2*p+1}")
        L.append("s_waitcnt lgkmcnt(0)")
        L.append("s_nop 1")
        for s in range(2):
            u = regs(s); P = u['P']
            L.append(f"v_mfma_f32_16x16x32_bf16 v[{u['SM']}:{u['SM']+3}], v[{R.ONE}:{R.ONE+3}], v[{P}:{P+3}], 0")
            L.append(f"v_mfma_f32_16x16x32_bf16 v[{u['O0']}:{u['O0']+3}], v[{u['V0']}:{u['V0']+3}], v[{P}:{P+3}], 0")
            L.append(f"v_mfma_f32_16x16x32_bf16 v[{u['O1']}:{u['O1']+3}], v[{u['V1']}:{u['V1']+3}], v[{P}:{P+3}], 0")
    def stD(L, g, h0):
        L.append("s_nop 7")
        for s in range(2):
            u = regs(s); L.append(f"v_rcp_f32 v{u['SM']}, v{u['SM']}")
        L.append("s_nop 0")
        for s in range(2):
            u = regs(s); h = h0 + s
            for r in range(4): L.append(f"v_mul_f32 v{u['O0']+r}, v{u['O0']+r}, v{u['SM']}")
            for r in range(4): L.append(f"v_mul_f32 v{u['O1']+r}, v{u['O1']+r}, v{u['SM']}")
            L.append(f"v_cvt_pk_bf16_f32 v{u['P']}, v{u['O0']}, v{u['O0']+1}")
            L.append(f"v_cvt_pk_bf16_f32 v{u['P']+1}, v{u['O0']+2}, v{u['O0']+3}")
            L.append(f"v_cvt_pk_bf16_f32 v{u['P']+2}, v{u['O1']}, v{u['O1']+1}")
            L.append(f"v_cvt_pk_bf16_f32 v{u['P']+3}, v{u['O1']+2}, v{u['O1']+3}")
            o = g*2560 + U0[h]*256
            L.append(f"ds_write_b64 v{R.AO+(h&1)}, v[{u['P']}:{u['P']+1}] offset:{o}")
            L.append("\n".join(["s_mov_b64 exec, 0xffff", f"ds_write_b64 v{R.AO1+(h&1)}, v[{u['P']+2}:{u['P']+3}] offset:{o}", "s_mov_b64 exec, -1"]))
    def o_store():
        S0 = S_A+2
        a(f"s_mul_i32 s{T0}, {sw}, 5120")
        a(f"s_add_u32 s{T0}, s{T0}, {L_Q}")
        a(f"v_add_u32 v{T}, s{T0}, v{R.VL}")
        a(f"s_lshl_b32 s{S0}, s{S_TB}, 2")
        a(f"s_lshl_b32 s{T0}, {sw}, 1")
        a(f"s_add_u32 s{S0}, s{S0}, s{T0}")
        a(f"s_mul_i32 s{S0}, s{S0}, {O_T}")
        a(f"s_mul_i32 s{T0}, s{S_FB}, 2560")
        a(f"s_add_u32 s{S0}, s{S0}, s{T0}")
        a(f"s_add_u32 s{S0}, s{S0}, {WS_O}")
        a("s_waitcnt lgkmcnt(0)")
        for i in range(5):
            a(f"ds_read_b128 v[{R.U+4*i}:{R.U+4*i+3}], v{T} offset:{i*1024}")
        for i in range(5):
            off = [0, 1024, 0, O_T + 512, O_T + 1536][i]
            a(f"s_add_u32 s{T0}, s{S0}, {off}")
            a(f"s_waitcnt lgkmcnt({4-i})")
            a(f"buffer_store_dwordx4 v[{R.U+4*i}:{R.U+4*i+3}], v{R.VMK if i == 2 else R.VL}, s[{SRD_WS}:{SRD_WS+3}], s{T0} offen sc1"); Sd.issue("o")
    def fo_addr():
        a(f"s_lshl_b32 s{T0}, s{S_TB}, 7")
        a(f"s_lshl_b32 s{T0+1}, s{S_FB}, 2")
        a(f"s_add_u32 s{T0}, s{T0}, s{T0+1}")
        a(f"s_add_u32 s{T0}, s{T0}, {F_O}")
    t_fp = int(E_("T_PW", "2")); t_poll = int(E_("T_FPP", "3")); t_att = int(E_("T_ATT", "5")); budget = int(E_("ATT_B", "800"))
    Sd.at_post("c.t0", setup)
    Sd.at_post("c.t0", fw_issue)
    Sd.at_post("c.t1", fw_check)
    Sd.at_post("c.t1", Sd.flag_store(ref_addr, "ref"))
    Sd.at_post(f"c.t{t_fp}", Sd.flag_store(fp_addr, "fp"))
    Sd.at_post(f"c.t{t_poll}", poll_fp)
    Sd.at_post(f"c.t{t_poll}", stage)
    Sd.at_pre(f"c.t{t_att}", lambda: Sd.wait("stg"))
    L = []
    for g in range(2):
        for h0 in (0, 2):
            stA(L, g, h0); stB(L); stC(L); stD(L, g, h0)
    chunks = [[]]; c = 0
    for x in L:
        k = sum(cost(y) for y in x.split("\n"))
        if c + k > budget: chunks.append([]); c = 0
        chunks[-1].append(x); c += k
    t = t_att
    for ch in chunks:
        Sd.at_post(f"c.t{t}", lambda ch=ch: [a(x) for x in ch])
        t += 1
    print("attention chunks:", len(chunks), "ticks", t_att, "..", t - 1)
    Sd.at_post(f"c.t{t}", o_store)
    Sd.at_pre(f"c.t{t+2}", lambda: Sd.wait("o"))
    Sd.at_post(f"c.t{t+2}", Sd.flag_store(fo_addr, "fo"))
    return t + 1
```

```python
from fw import *
from p1 import C1
from p2 import flag_poll, P2_NT, C2
import os
E_ = os.environ.get

K = 1024
P3_SL, P3_NSL, P3_STEPS = 20*K, 12, 47
P3_SLOT = [120*K, 140*K, 80*K, 100*K, 16*K, 36*K, 56*K, 120*K, 140*K, 80*K, 100*K, 0]
P3_BARS = [int(x) for x in E_("P3_BARS", "1,2,3,4,5,6,7,8,9,10,11").split(",")]
S_HC = int(E_("S_HC", "18"))
S_HF = int(E_("S_HF", "6"))
H_NB = int(E_("H_NB", "10"))
O_BAR = E_("O_BAR", "c.t15")

def sched():
    L = [(4*j - 2, f"d.t{j}") for j in P3_BARS]
    hname = None
    for s, n in L:
        if s == S_HC: hname = n
    if hname is None:
        hname = "d.H"; L.append((S_HC, hname)); L.sort(key=lambda x: x[0])
    return L, hname

class D3:
    VL = 40
    S_M10, S_M8, S_W10, S_W8 = S_A+12, S_A+13, S_A+14, S_A+15

def p3_dma(D, t_att_free):
    a = D.a; w = f"s{S_LW}"; R = D3
    def setup():
        a(f"v_lshlrev_b32 v{R.VL}, 4, v{VLANE}")
        a(f"s_mul_i32 s{R.S_M10}, {w}, 10240")
        a(f"s_lshl_b32 s{R.S_M8}, {w}, 13")
        a(f"s_mul_i32 s{T0}, s{S_FB}, {WB_CB}")
        a(f"s_add_u32 s{T0}, s{T0}, {WS_WB}")
        a(f"s_add_u32 s{R.S_W10}, s{T0}, s{R.S_M10}")
        a(f"s_add_u32 s{R.S_W8}, s{T0}, s{R.S_M8}")
    def mk(t):
        def f():
            if t == 0: setup()
            n, sm, sw_ = (10, R.S_M10, R.S_W10) if t < P3_NSL - 1 else (8, R.S_M8, R.S_W8)
            for k in range(n):
                if k % 4 == 0:
                    a(f"s_add_u32 m0, s{sm}, {P3_SLOT[t] + k*1024}")
                    a(f"s_add_u32 s{T0}, s{sw_}, {t*P3_SL + k*1024}")
                a(f"buffer_load_dwordx4 v{R.VL}, s[{SRD_WS}:{SRD_WS+3}], s{T0} offen offset:{(k%4)*1024} sc1 lds"); D.issue(("dW", t))
        return f
    mins = E_("P3_MIN", "c.t2,c.t3,A,A1,c.t15,c.E,c.E,-,-,-,-,c.E").split(",")
    order = [int(x) for x in E_("P3_ORD", "0,1,2,3,4,5,6,11,7,8,9,10").split(",")]
    def barname(k): return f"c.t{k}" if k < P2_NT else "c.E"
    sl = {}
    for t in range(P3_NSL):
        m = mins[t]
        if m == "A": m = barname(t_att_free)
        elif m == "A1": m = barname(t_att_free + 1)
        elif m == "-": m = None
        lo = P3_SLOT[t]; n = P3_SL if t < P3_NSL - 1 else 16*K
        if 80*K <= lo < 120*K and t < 7:
            k = P2_NT if m == "c.E" else int(m[3:]); assert k >= t_att_free, "attention region still busy"
        sl[t] = Slice(("dW", t), lo, lo + n, mk(t), minbar=m)
    from p2 import P2_R
    for t in order:
        m = sl[t].minbar; pos = len(D.slices)
        if m and m.startswith("c.t"):
            k = int(m[3:]); nxt = k + P2_R
            for i, s in enumerate(D.slices):
                if s.tag == ("c", nxt): pos = i; break
        D.slices.insert(pos, sl[t])
    D.bars.append(("c.E", ("dW", 0), [("c", P2_NT - 1)]))
    L, hname = sched()
    tb = [j for j in P3_BARS]
    for (s, name) in L:
        if name == "d.H": D.bars.append((name, None, [])); continue
        j = int(name[3:]); i = tb.index(j)
        upto = (tb[i+1] if i + 1 < len(tb) else P3_NSL) - 1
        need = [("dW", t) for t in range(j, upto + 1)]
        D.bars.append((name, need, [("dW", t) for t in range(0, j - 1)]))

class C3:
    XO = 32
    XH = 216
    S, B = 112, 144
    WF = [0, 176, 196]
    XP = 20
    VB = [244, 136, 137]
    VO = 164
    VFA, VFD = 166, 167
    T, U, E = 168, 176, 184
    S_O, S_HH = S_A + 5, S_A + 6

def xreg(s):
    C = C3
    if s < 20: return C.XO + 4*s
    j = s - 20
    return C.XO + 4*j if j < 20 else C.XH + 4*(j - 20)

def w_reads(s):
    C = C3; t, st = s//4, s % 4; d = C.WF[s % 3]; L = []
    for nb in range(5):
        A = P3_SLOT[t] + st*5120 + nb*1024
        L.append(f"ds_read_b128 v[{d+4*nb}:{d+4*nb+3}], v{C.VB[A//65536]} offset:{A % 65536}")
    return L

def p3_pre(a, cons):
    C = C3; tmp = T0
    def x_load(s):
        def f():
            r = xreg(s)
            if s < 20:
                a(f"s_add_u32 s{tmp}, s{C.S_O}, {(s//4)*4096}")
                off = (s % 4)*1024
            else:
                a(f"s_add_u32 s{tmp}, s{C.S_HH}, {((s-20)//4)*4096}")
                off = ((s - 20) % 4)*1024
            a(f"buffer_load_dwordx4 v[{r}:{r+3}], v{C.VB[0]}, s[{SRD_WS}:{SRD_WS+3}], s{tmp} offen offset:{off} sc1"); cons.issue(("X", s))
        return f
    cons.x_load = x_load
    def setup():
        a(f"v_lshlrev_b32 v{C.VB[0]}, 4, v{VLANE}")
        a(f"s_lshl_b32 s{tmp}, s{S_TB}, 2")
        a(f"s_add_u32 s{tmp}, s{tmp}, s{S_WAVE}")
        a(f"s_mul_i32 s{C.S_O}, s{tmp}, {O_T}")
        a(f"s_add_u32 s{C.S_O}, s{C.S_O}, {WS_O}")
        a(f"s_mul_i32 s{C.S_HH}, s{tmp}, {H_T}")
        a(f"s_add_u32 s{C.S_HH}, s{C.S_HH}, {WS_H}")
    if O_BAR == "c.t15": osch = {60: range(0, 5), 61: range(5, 10), 62: range(10, 15), 63: range(15, 20)}
    else:
        n = int(E_("O_N63", "20")); osch = {63: range(0, n), 64: range(n, 20)}
    def rx(s):
        L = []
        if s == 58: L.append(setup)
        if s == 63:
            L += [f"v_add_u32 v{C.VB[1]}, 0x10000, v{C.VB[0]}", f"v_add_u32 v{C.VB[2]}, 0x20000, v{C.VB[0]}"]
            L += w_reads(0)
        L += [x_load(k) for k in osch.get(s, [])]
        return L
    def tail(s):
        return w_reads(1) if s == 63 else []
    def after_epi():
        for k in osch.get(64, []): x_load(k)()
    return rx, tail, after_epi

def p3_consumer(a, cons):
    C = C3; T = C.T; tmp = T0
    VT15, VQ, VCQ = C1.VT15, C1.VQ, C1.VCQ
    x_load = cons.x_load
    L, hname = sched(); bars = {}
    for s, n in L: bars.setdefault(s, []).append(n)
    def x_loads():
        a(f"s_lshl_b32 s{tmp}, s{S_TB}, 6")
        a(f"s_lshl_b32 s{tmp+1}, s{S_WAVE}, 4")
        a(f"s_add_u32 s{tmp}, s{tmp}, s{tmp+1}")
        a(f"v_add_u32 v{T}, s{tmp}, v{VT15}")
        a(f"v_mul_u32_u24 v{T}, 1280, v{T}")
        a(f"s_mul_i32 s{tmp}, s{S_FB}, 160")
        a(f"v_add_u32 v{T}, s{tmp}, v{T}")
        a(f"v_lshl_add_u32 v{C.VO}, v{VCQ}, 4, v{T}")
        a(f"v_lshl_add_u32 v{C.VO+1}, v{VQ}, 3, v{T}")
        mk_srd(a, SRD_M, P_X, 2048*1280)
        a(f"buffer_load_dwordx4 v[{C.XP}:{C.XP+3}], v{C.VO}, s[{SRD_M}:{SRD_M+3}], 0 offen"); cons.issue("xp")
        a(f"buffer_load_dwordx4 v[{C.XP+4}:{C.XP+7}], v{C.VO}, s[{SRD_M}:{SRD_M+3}], 0 offen offset:64"); cons.issue("xp")
        a(f"buffer_load_dwordx2 v[{C.XP+8}:{C.XP+9}], v{C.VO+1}, s[{SRD_M}:{SRD_M+3}], 0 offen offset:128"); cons.issue("xp")
    def fh_prep():
        a(f"s_lshl_b32 s{tmp}, s{S_TB}, 5")
        a(f"s_lshl_b32 s{tmp+1}, s{S_FB}, 2")
        a(f"s_add_u32 s{tmp}, s{tmp}, s{tmp+1}")
        a(f"s_add_u32 s{tmp}, s{tmp}, s{S_WAVE}")
        a(f"s_lshl_b32 s{tmp}, s{tmp}, 2")
        a(f"s_add_u32 s{tmp}, s{tmp}, {F_H}")
        a(f"v_mov_b32 v{C.VFA}, {hex(OOB)}")
        a(f"v_mov_b32 v{T}, s{tmp}")
        a(f"v_cmp_eq_u32 vcc, 0, v{VLANE}")
        a(f"v_mov_b32 v{C.VFD}, s{S_NONCE}")
        a("s_nop 0")
        a(f"v_cndmask_b32 v{C.VFA}, v{C.VFA}, v{T}, vcc")
    def fh_store():
        cons.wait("h")
        a(f"buffer_store_dword v{C.VFD}, v{C.VFA}, s[{SRD_WS}:{SRD_WS+3}], 0 offen sc1"); cons.issue("fh")
    fh_prep()
    S_XP = int(E_("S_XP", "8"))
    hl = {s: [] for s in range(P3_STEPS)}
    nxt = 20
    for s in range(S_HC, P3_STEPS):
        lim = 20 + H_NB + max(0, s - 20) + (1 if s >= 20 else 0)
        while nxt < P3_STEPS and nxt < lim:
            j = nxt - 20
            if j < 20 and j >= s: break
            hl[s].append(nxt); nxt += 1
    assert nxt == P3_STEPS, nxt
    for s in range(P3_STEPS):
        if s == S_HF: fh_store()
        for n in bars.get(s, []): cons.bar(n)
        pre = [x_load(k) for k in hl[s]] if s == S_HC else []
        for f in pre: f()
        if s == S_XP: x_loads()
        cons.wait(("X", s))
        a(f"s_waitcnt lgkmcnt({5 if s + 1 < P3_STEPS else 0})")
        A = C.S if s < 20 else C.B; first = s in (0, 20)
        wf = C.WF[s % 3]; x = xreg(s)
        m = []
        for nb in range(5):
            acc = A + 4*nb; c = "0" if first else f"v[{acc}:{acc+3}]"
            m.append(f"v_mfma_f32_16x16x32_bf16 v[{acc}:{acc+3}], v[{wf+4*nb}:{wf+4*nb+3}], v[{x}:{x+3}], {c}")
        r = w_reads(s + 2) if s + 2 < P3_STEPS else []
        if s != S_HC: r = [x_load(k) for k in hl[s]] + r
        for xx in interleave(m, r):
            if callable(xx): xx()
            else: a(xx)
    U, E = C.U, C.E
    cons.wait("xp")
    mk_srd(a, SRD_M, P_OUT, 2048*1280)
    a(f"v_mov_b32 v{T}, {f32hex(-LOG2E)}")
    a(f"v_mov_b32 v{T+1}, {f32hex(-LOG2E)}")
    a(f"v_mov_b32 v{T+2}, 1.0")
    a(f"v_mov_b32 v{T+3}, 1.0")
    a("s_nop 4")
    def unit(regsB, regsS, xp, n):
        for h in range(n):
            a(f"v_pk_mul_f32 v[{E+2*h}:{E+2*h+1}], v[{regsB[h]}:{regsB[h]+1}], v[{T}:{T+1}]")
        for r in range(2*n): a(f"v_exp_f32 v{E+r}, v{E+r}")
        for p in range(n):
            a(f"v_lshlrev_b32 v{U+2*p}, 16, v{xp+p}")
            a(f"v_and_b32 v{U+2*p+1}, 0xffff0000, v{xp+p}")
        for h in range(n):
            a(f"v_pk_add_f32 v[{E+2*h}:{E+2*h+1}], v[{E+2*h}:{E+2*h+1}], v[{T+2}:{T+3}]")
        for r in range(2*n): a(f"v_rcp_f32 v{E+r}, v{E+r}")
        for h in range(n):
            a(f"v_pk_mul_f32 v[{regsB[h]}:{regsB[h]+1}], v[{regsB[h]}:{regsB[h]+1}], v[{regsS[h]}:{regsS[h]+1}]")
        a("s_nop 0")
        for h in range(n):
            a(f"v_pk_fma_f32 v[{U+2*h}:{U+2*h+1}], v[{regsB[h]}:{regsB[h]+1}], v[{E+2*h}:{E+2*h+1}], v[{U+2*h}:{U+2*h+1}]")
        for p in range(n):
            a(f"v_cvt_pk_bf16_f32 v{xp+p}, v{U+2*p}, v{U+2*p+1}")
    for pr in range(2):
        s0 = C.S + 8*pr; b0 = C.B + 8*pr
        for r in range(4): a(f"v_permlane16_swap_b32 v{s0+r}, v{s0+4+r}")
        for r in range(4): a(f"v_permlane16_swap_b32 v{b0+r}, v{b0+4+r}")
        a("s_nop 1")
        unit([b0+2*h for h in range(4)], [s0+2*h for h in range(4)], C.XP + 4*pr, 4)
        a(f"buffer_store_dwordx4 v[{C.XP+4*pr}:{C.XP+4*pr+3}], v{C.VO}, s[{SRD_M}:{SRD_M+3}], 0 offen offset:{64*pr}")
    unit([C.B+16, C.B+18], [C.S+16, C.S+18], C.XP + 8, 2)
    a(f"buffer_store_dwordx2 v[{C.XP+8}:{C.XP+9}], v{C.VO+1}, s[{SRD_M}:{SRD_M+3}], 0 offen offset:128")

class S3:
    VF, VT, T = 160, 161, 140

def p3_side(Sd):
    a = Sd.a; R = S3; T = R.T
    L, hname = sched()
    def poll(base, mask, lab):
        def f():
            a(f"s_lshl_b32 s{T0}, s{S_TB}, 7")
            a(f"s_add_u32 s{T0}, s{T0}, {base}")
            a(f"v_and_b32 v{T}, {mask}, v{VLANE}")
            a(f"v_lshl_add_u32 v{R.VF}, v{T}, 2, s{T0}")
            flag_poll(a, Sd, R.VF, R.VT, SRD_WS, lab)
        return f
    Sd.at_pre(O_BAR, poll(F_O, 7, "Lfo"))
    Sd.at_pre(hname, poll(F_H, 31, "Lfh"))
```

```python
import sys
from fw import *
from p1 import *
from p2 import *
from p3 import *

def prologue(a, name):
    a(f".globl {name}\n.p2align 8\n.type {name},@function\n{name}:")
    a("s_cmp_ge_u32 s2, 256")
    a("s_cbranch_scc1 L_end")
    load_ptrs(a)
    a("v_lshrrev_b32 v1, 6, v0")
    a(f"v_and_b32 v{VLANE}, 63, v0")
    if PROFBAR or DBGT: a(f"{MEMTIME} s[{S_T00}:{S_T00+1}]")
    if DBGT: a("s_memrealtime s[90:91]")
    a("v_readfirstlane_b32 s3, v1")
    a("s_waitcnt lgkmcnt(0)")
    mk_srd(a, SRD_WS, P_WS, WS_BYTES)
    a(f"s_add_u32 s{T0}, s{P_WS}, {F_REF}")
    a(f"s_addc_u32 s{T0+1}, s{P_WS+1}, 0")
    a(f"s_load_dword s{S_NONCE}, s[{T0}:{T0+1}], 0")

import os
DBGT = os.environ.get("DBGT", "") == "1"
def dbg_dump(a):
    a("s_waitcnt vmcnt(0)")
    a("s_memtime s[92:93]")
    a("s_memrealtime s[94:95]")
    a("s_waitcnt lgkmcnt(0)")
    mk_srd(a, SRD_M, P_DBG, 256)
    a("s_sub_u32 s92, s92, s58")
    a("s_sub_u32 s96, s94, s90")
    a("s_not_b32 s90, s90")
    a("v_mov_b32 v2, 0")
    a("v_mov_b32 v3, s94")
    a("v_mov_b32 v4, s90")
    a("v_mov_b32 v5, s92")
    a("v_mov_b32 v6, s96")
    a(f"v_cmp_eq_u32 vcc, 0, v{VLANE}")
    a("s_and_saveexec_b64 s[22:23], vcc")
    a(f"buffer_atomic_umax v3, v2, s[{SRD_M}:{SRD_M+3}], 0 offen")
    a(f"buffer_atomic_umax v4, v2, s[{SRD_M}:{SRD_M+3}], 0 offen offset:4")
    a(f"buffer_atomic_umax v5, v2, s[{SRD_M}:{SRD_M+3}], 0 offen offset:8")
    a(f"buffer_atomic_umax v6, v2, s[{SRD_M}:{SRD_M+3}], 0 offen offset:12")
    a("s_mov_b64 exec, s[22:23]")
    a("s_waitcnt vmcnt(0)")
def gen(name=KNAME, upto=3, header=""):
    a = Asm()
    if header: a(header.rstrip("\n"))
    a(f"; @launch grid=(256,1,1) block=(512,1,1) lds={LDS_BYTES}")
    a('.amdgcn_target "amdgcn-amd-amdhsa--gfx950"')
    a(".text")
    prologue(a, name)
    ids(a)
    a("s_cmp_ge_u32 s3, 6")
    a("s_cbranch_scc1 L_side")
    a("s_cmp_ge_u32 s3, 4")
    a("s_cbranch_scc1 L_dma")
    cons = Role(a)
    Sd = Side(a)
    D = DMA(a)
    p1_side(Sd)
    t_free = p2_side(Sd) if upto >= 2 else None
    if upto >= 3: p3_side(Sd)
    if upto >= 2:
        bias_loads, w_first = p2_pre(a, cons)
        p1_consumer(a, cons, post_bE=w_first, in_b=bias_loads)
        if upto >= 3:
            rx, tail, after = p3_pre(a, cons)
            p2_consumer(a, cons, rx=rx, tail=tail, after=after)
            p3_consumer(a, cons)
        else:
            p2_consumer(a, cons)
    else:
        p1_consumer(a, cons)
    if DBGT: dbg_dump(a)
    if PROFBAR:
        a("s_waitcnt vmcnt(0)")
        cons.stamp(NSTAMP-2); prof_dump_v(a)
    a("s_endpgm")
    a(".p2align 6")
    a("L_dma:")
    PD = os.environ.get("PRIO_D", ""); PS = os.environ.get("PRIO_S", ""); PC = os.environ.get("PRIO_C", "")
    if PD: a(f"s_setprio {PD}")
    p1_dma(D)
    D.pre_first.append(lambda: nonce_fin(a))
    if upto >= 2: p2_dma(D)
    if upto == 2: D.bars.append(("c.E", None, []))
    if upto >= 3: p3_dma(D, t_free)
    D.emit()
    if PROFBAR:
        a("s_waitcnt vmcnt(0)")
        D.stamp(NSTAMP-2); prof_dump_v(a)
    a("s_endpgm")
    a(".p2align 6")
    a("L_side:")
    if PS: a(f"s_setprio {PS}")
    Sd.emit(cons.names)
    if PROFBAR:
        a("s_waitcnt vmcnt(0)")
        Sd.stamp(NSTAMP-2); prof_dump_v(a)
    assert D.names == cons.names == Sd.names, (D.names, cons.names, Sd.names)
    a("L_end:")
    a("s_endpgm")
    a('.section .rodata,"a"')
    a(kernel_desc(name))
    import hz
    return hz.fix(a.text()), cons.names

if __name__ == "__main__":
    upto = int(sys.argv[1]) if len(sys.argv) > 1 else 3
    out = sys.argv[2] if len(sys.argv) > 2 else "k.s"
    ref = open("recurrent_scan__sliding_local_dilated__mixer_gmlp__prompt.s.ref").read().split("\n")
    hdr = []
    for l in ref:
        if l.startswith("; @launch"): break
        hdr.append(l)
    asm, names = gen(upto=upto, header="\n".join(hdr))
    open(out, "w").write(asm)
    print(len(asm), "bytes", len(names), "barriers")
```
